```python
import torch

def _softmax(x, axis=-1):
    return torch.softmax(x, dim=axis)
def _gelu(x):
    return torch.nn.functional.gelu(x, approximate="tanh")
def _silu(x):
    return torch.nn.functional.silu(x)
def _sigmoid(x):
    return torch.sigmoid(x)
def _layernorm(x, axis=-1, eps=1e-5):
    m = x.mean(dim=axis, keepdim=True)
    v = x.var(dim=axis, keepdim=True, unbiased=False)
    return (x - m) / torch.sqrt(v + eps)
def _scatter_add(tgt, idx, src, axis=0):
    return tgt.clone().index_add_(axis, idx, src)
def _segment_sum(src, seg, n):
    out = torch.zeros((n,) + src.shape[1:], dtype=src.dtype)
    return out.index_add_(0, seg, src)
def _pad(x, pw):
    flat = tuple(v for pair in reversed(pw) for v in pair)
    return torch.nn.functional.pad(x, flat)

kernel_name = 'recurrent_scan__ssm_conv_s4d__geglu_ffn__prompt'

def setup_inputs():

    _w = (lambda a: (lambda t: t.to(torch.bfloat16) if t.is_floating_point() else t)(torch.as_tensor(a)))
    def _A_setup():
        Bsz, L, D, N = 1, 2048, 512, 128
        return {
            "u": _w((lambda *s: torch.randn(*s, dtype=torch.bfloat16) * 0.05)(Bsz, L, D)),
            "log_A_real": _w((lambda *s: torch.randn(*s, dtype=torch.bfloat16) * 6.4)(D, N) * 0.5),
            "A_imag": _w((lambda *s: torch.randn(*s, dtype=torch.bfloat16) * 0.05)(D, N) * 3.14),
            "C_real": _w((lambda *s: torch.randn(*s, dtype=torch.bfloat16) * 0.05)(D, N) / N ** 0.5),
            "C_imag": _w((lambda *s: torch.randn(*s, dtype=torch.bfloat16) * 0.05)(D, N) / N ** 0.5),
            "log_dt": _w((lambda *s: torch.randn(*s, dtype=torch.bfloat16) * 0.05)(D) * 0.5 - 4.0),
            "D_skip": _w((lambda *s: torch.randn(*s, dtype=torch.bfloat16) * 0.05)(D)),
        }
    _A_in = _A_setup()

    def _B_setup():
        B, S, D, F = 1, 2048, 512, 1792
        return {
            "x": _w((lambda *s: torch.randn(*s, dtype=torch.bfloat16) * 0.05)(B, S, D)),
            "w_gate": _w((lambda *s: torch.randn(*s, dtype=torch.bfloat16) * 0.05)(D, F)),
            "w_up": _w((lambda *s: torch.randn(*s, dtype=torch.bfloat16) * 0.05)(D, F)),
            "w_down": _w((lambda *s: torch.randn(*s, dtype=torch.bfloat16) * 0.05)(F, D)),
        }
    _B_in = _B_setup()

    return {
        "A_u": _A_in["u"],
        "A_log_A_real": _A_in["log_A_real"],
        "A_A_imag": _A_in["A_imag"],
        "A_C_real": _A_in["C_real"],
        "A_C_imag": _A_in["C_imag"],
        "A_log_dt": _A_in["log_dt"],
        "A_D_skip": _A_in["D_skip"],
        "B_x": _B_in["x"],
        "B_w_gate": _B_in["w_gate"],
        "B_w_up": _B_in["w_up"],
        "B_w_down": _B_in["w_down"],
    }

def reference(A_u, A_log_A_real, A_A_imag, A_C_real, A_C_imag, A_log_dt, A_D_skip, B_x, B_w_gate, B_w_up, B_w_down):
    def _A_ref(u, log_A_real, A_imag, C_real, C_imag, log_dt, D_skip):
        L = u.shape[1]
        dt = torch.exp(log_dt)
        A = -torch.exp(log_A_real) + 1j * A_imag
        C = (C_real + 1j * C_imag) * dt[:, None]
        pos = (lambda x, dt: x.to(dt))(torch.arange(L), log_dt.dtype)
        P = torch.exp((A * dt[:, None])[:, :, None] * pos[None, None, :])
        K = 2.0 * torch.einsum("dn,dnl->dl", C, P).real
        L2 = 2 * L
        u_t = (lambda x, *d: x.permute(*d))(u, 0, 2, 1)
        Kf = (lambda x, *a, **k: torch.fft.rfft(x.float(), *a, **k))(K, L2)
        Uf = (lambda x, *a, **k: torch.fft.rfft(x.float(), *a, **k))(u_t, L2)
        y = (lambda x, *a, **k: torch.fft.irfft(x, *a, **k).to(torch.bfloat16))(Uf * Kf[None, :, :], L2)[:, :, :L]
        y = (lambda x, *d: x.permute(*d))(y, 0, 2, 1)
        return y + u * D_skip[None, None, :]

    def _B_ref(x, w_gate, w_up, w_down):
        return (_gelu(x @ w_gate) * (x @ w_up)) @ w_down

    x = A_u
    xn = _layernorm(x, axis=-1)
    s = _A_ref(xn, A_log_A_real, A_A_imag, A_C_real, A_C_imag, A_log_dt, A_D_skip)
    g = _silu(_B_ref(xn, B_w_gate, B_w_up, B_w_down))
    return x + s * g
```

```python
import copy
import struct


class Reg:
    __slots__ = ("k", "i", "n")

    def __init__(self, k, i, n=1):
        self.k, self.i, self.n = k, i, n

    def __str__(self):
        if self.n == 1:
            return f"{self.k}{self.i}"
        return f"{self.k}[{self.i}:{self.i + self.n - 1}]"

    __repr__ = __str__

    def __getitem__(self, j):
        if isinstance(j, slice):
            a = j.start or 0
            b = self.n if j.stop is None else j.stop
            assert 0 <= a < b <= self.n, (a, b, self.n)
            return Reg(self.k, self.i + a, b - a)
        assert 0 <= j < self.n, (j, self.n)
        return Reg(self.k, self.i + j, 1)

    def keys(self):
        return [(self.k, self.i + j) for j in range(self.n)]


class Mod:
    def __init__(self, r, fmt):
        self.r, self.fmt = r, fmt

    def __str__(self):
        return self.fmt.format(self.r)


def neg(r):
    return Mod(r, "-{}")


def absm(r):
    return Mod(r, "|{}|")


def f2u(x):
    return struct.unpack("<I", struct.pack("<f", x))[0]


def fl(x):
    return "0x%08x" % f2u(x)


TRANS = ("v_exp_f32", "v_log_f32", "v_rcp_f32", "v_rsq_f32", "v_sqrt_f32", "v_sin_f32", "v_cos_f32",
         "v_rcp_iflag_f32", "v_exp_f16", "v_rcp_f16")

XDL_RW = {2: 5, 4: 8, 8: 12, 16: 20}
XDL_C_SAME = {2: 2, 4: 0, 8: 0, 16: 0}
XDL_C_OVL = {2: 4, 4: 6, 8: 10, 16: 18}
XDL_SG_C = {2: 3, 4: 6, 8: 10, 16: 18}
SG_RW = {2: 4, 4: 6, 8: 10, 16: 18}
SG_C_SAME = {2: 2, 4: 0, 8: 0, 16: 0}
SG_C_OVL = {2: 2, 4: 4, 8: 8, 16: 16}
XDL_C_WAR = {2: 1, 4: 3, 8: 7, 16: 15}


def mfma_info(mn):
    if mn.endswith("16x16x4_f32"):
        return ("sg", 8)
    if mn.endswith("32x32x2_f32"):
        return ("sg", 16)
    if "16x16x32" in mn:
        return ("xdl", 4)
    if "32x32x16" in mn:
        return ("xdl", 8)
    raise ValueError(mn)


class HState:
    def __init__(self):
        self.t = 0
        self.vw = {}
        self.mw = {}
        self.mc = {}
        self.sw = {}
        self.m0 = None
        self.st = {}
        self.ex = None


class Asm:
    def __init__(self):
        self.lines = []
        self.h = HState()
        self.vnext = 0
        self.snext = 0
        self.vmax = 0
        self.smax = 0
        self.nlabel = 0
        self.nops = 0

    def reset_regs(self, v0=1, s0=4):
        self.vnext, self.snext = v0, s0
        self.vmax, self.smax = v0, s0

    def v(self, n=1, align=None):
        al = align or (1 if n == 1 else (2 if n == 2 else 4 if n % 4 == 0 else 2))
        i = (self.vnext + al - 1) // al * al
        self.vnext = i + n
        self.vmax = max(self.vmax, self.vnext)
        assert self.vnext <= 256, "out of vgprs"
        return Reg("v", i, n)

    def s(self, n=1, align=None):
        al = align or (1 if n == 1 else (2 if n == 2 else 4))
        i = (self.snext + al - 1) // al * al
        self.snext = i + n
        self.smax = max(self.smax, self.snext)
        assert self.snext <= 100, "out of sgprs"
        return Reg("s", i, n)

    def mark(self):
        return (self.vnext, self.snext)

    def release(self, m):
        self.vnext, self.snext = m

    def raw(self, s):
        self.lines.append(s)

    def comment(self, s):
        self.lines.append("    ; " + s)

    def label(self, name):
        self.lines.append(name + ":")

    def newlabel(self, base="L"):
        self.nlabel += 1
        return f"{base}_{self.nlabel}"

    def nop(self, states):
        while states > 0:
            n = min(states, 16)
            self.lines.append(f"    s_nop {n - 1}")
            self.h.t += n
            self.nops += n
            states -= n

    @staticmethod
    def _keys(op):
        if isinstance(op, Mod):
            op = op.r
        if isinstance(op, Reg):
            return op.keys()
        if isinstance(op, str) and op in ("vcc", "exec", "m0"):
            return [op]
        return []

    def __call__(self, mn, *ops, mod=""):
        h = self.h
        need = 0
        import re as _re
        mo = _re.search(r"offset:(\d+)", mod)
        if mo:
            lim = 65535 if mn.startswith("ds_") else 4095
            assert int(mo.group(1)) <= lim, (mn, mod)

        def req(tprod, n):
            nonlocal need
            need = max(need, tprod + n + 1)

        K = self._keys
        isv = lambda k: isinstance(k, tuple) and k[0] in ("v", "a")
        iss = lambda k: (isinstance(k, tuple) and k[0] == "s") or k == "vcc"
        vreads, vwrites, sreads_valu, swrites_valu = [], [], [], []
        kind = None
        is_dpp = ("quad_perm" in mod) or ("row_" in mod) or ("wave_" in mod)
        if mn.startswith("v_mfma"):
            kind = "mfma"
        elif mn.startswith("v_"):
            kind = "valu"
        elif mn.startswith("ds_"):
            kind = "ds"
        elif mn.startswith("buffer_") or mn.startswith("global_") or mn.startswith("flat_"):
            kind = "vmem"
        else:
            kind = "salu"

        def mfma_d_hazard_for_rw(key):
            e = h.mw.get(key)
            if e:
                t, cls, p, _ = e
                req(t, (XDL_RW if cls == "xdl" else SG_RW)[p])

        if kind == "valu":
            if mn.startswith("v_cmp"):
                dst = K(ops[0]); srcs = [k for o in ops[1:] for k in K(o)]
                swrites_valu = dst
                assert not mn.startswith("v_cmpx")
            elif mn in ("v_readfirstlane_b32", "v_readlane_b32"):
                swrites_valu = K(ops[0])
                srcs = K(ops[1])
                for k in srcs:
                    if k in h.vw:
                        req(h.vw[k][0], 1)
                if mn == "v_readlane_b32":
                    for k in K(ops[2]):
                        if k in h.sw:
                            req(h.sw[k], 4)
            elif mn.startswith("v_permlane"):
                vwrites = K(ops[0]) + K(ops[1])
                srcs = list(vwrites)
                for k in srcs:
                    if k in h.vw:
                        req(h.vw[k][0], 2)
            elif "_co_" in mn:
                vwrites = K(ops[0]); swrites_valu = K(ops[1])
                srcs = [k for o in ops[2:] for k in K(o)]
            else:
                vwrites = K(ops[0])
                srcs = [k for o in ops[1:] for k in K(o)]
                if mn.startswith("v_fmac") or mn.startswith("v_dot2c") or mn.startswith("v_pk_fmac") or is_dpp:
                    srcs = srcs + vwrites
            if is_dpp:
                for k in K(ops[1]):
                    if k in h.vw:
                        req(h.vw[k][0], 2)
                if h.ex is not None:
                    req(h.ex, 5)
            istrans = mn in TRANS
            for k in srcs:
                if isv(k):
                    mfma_d_hazard_for_rw(k)
                    e = h.vw.get(k)
                    if e and e[1] and not istrans:
                        req(e[0], 1)
                elif iss(k):
                    if k in h.sw:
                        req(h.sw[k], 2)
            for k in vwrites:
                mfma_d_hazard_for_rw(k)
                if k in h.mc:
                    req(h.mc[k][0], XDL_C_WAR[h.mc[k][1]])
                if k in h.st:
                    req(h.st[k], 2)
        elif kind == "mfma":
            cls, p = mfma_info(mn)
            d = ops[0]
            for o in ops[1:3]:
                for k in K(o):
                    if k in h.vw:
                        req(h.vw[k][0], 2)
                    mfma_d_hazard_for_rw(k)
            c = ops[3]
            if isinstance(c, Reg):
                for k in c.keys():
                    if k in h.vw:
                        req(h.vw[k][0], 2)
                    e = h.mw.get(k)
                    if e:
                        t, pcls, pp, rg = e
                        same = rg == (c.k, c.i, c.n) and pcls == cls and pp == p
                        if pcls == "xdl":
                            if cls == "xdl":
                                req(t, (XDL_C_SAME if same else XDL_C_OVL)[pp])
                            else:
                                req(t, XDL_SG_C[pp])
                        else:
                            if cls == "sg":
                                req(t, (SG_C_SAME if same else SG_C_OVL)[pp])
            for k in d.keys():
                e = h.mw.get(k)
                if e and not (isinstance(c, Reg) and (c.k, c.i, c.n) == (d.k, d.i, d.n)):
                    t, pcls, pp, rg = e
                    req(t, (XDL_C_OVL if pcls == "xdl" else SG_C_OVL)[pp])
                if k in h.st:
                    req(h.st[k], 2)
            if h.ex is not None:
                req(h.ex, 4)
        elif kind in ("ds", "vmem"):
            reads, writes = [], []
            sregs = []
            lds_dma = kind == "vmem" and (" lds" in (" " + mod) or "load_lds" in mn)
            if kind == "ds":
                if mn.startswith("ds_read") or "permute" in mn or "swizzle" in mn:
                    writes = K(ops[0]); reads = [k for o in ops[1:] for k in K(o)]
                else:
                    reads = [k for o in ops for k in K(o)]
            else:
                if mn.startswith("buffer_load") and not lds_dma:
                    writes = K(ops[0]); rest = ops[1:]
                elif mn.startswith("global_load") and not lds_dma:
                    writes = K(ops[0]); rest = ops[1:]
                else:
                    rest = ops
                allk = [k for o in rest for k in K(o)]
                reads = [k for k in allk if isv(k)]
                sregs = [k for k in allk if iss(k)]
                if lds_dma and h.m0 is not None:
                    req(h.m0, 1)
            for k in reads:
                if isv(k):
                    mfma_d_hazard_for_rw(k)
            for k in writes:
                mfma_d_hazard_for_rw(k)
                if k in h.st:
                    req(h.st[k], 1)
            for k in sregs:
                if k in h.sw:
                    req(h.sw[k], 5)
        if need > h.t:
            self.nop(need - h.t)
        t = h.t
        if kind == "valu":
            istrans = mn in TRANS
            for k in vwrites:
                h.vw[k] = (t, istrans)
                h.mw.pop(k, None)
            for k in swrites_valu:
                if k == "exec":
                    h.ex = t
                else:
                    h.sw[k] = t
        elif kind == "mfma":
            cls, p = mfma_info(mn)
            d = ops[0]
            for k in d.keys():
                h.mw[k] = (t, cls, p, (d.k, d.i, d.n))
                h.vw.pop(k, None)
            if cls == "xdl" and isinstance(ops[3], Reg):
                for k in ops[3].keys():
                    h.mc[k] = (t, p)
        elif kind in ("ds", "vmem"):
            if kind == "vmem" and ("store_dwordx4" in mn or "store_dwordx3" in mn):
                data = ops[0] if mn.startswith("buffer") else ops[1]
                for k in K(data):
                    h.st[k] = t
            if (kind == "ds" and mn.startswith("ds_read")) or (kind == "vmem" and "load" in mn and not lds_dma):
                for k in K(ops[0]):
                    h.vw.pop(k, None)
                    h.mw.pop(k, None)
        else:
            if ops and isinstance(ops[0], str) and ops[0] == "m0":
                h.m0 = t
            elif ops:
                for k in K(ops[0]):
                    h.sw.pop(k, None)
        h.t = t + 1
        txt = "    " + mn
        if ops:
            txt += " " + ", ".join(str(o) for o in ops)
        if mod:
            txt += " " + mod
        self.lines.append(txt)

    def clear(self):
        h = self.h
        need = 0
        for k, (t, tr) in h.vw.items():
            need = max(need, t + 2 + 1)
        for k, (t, cls, p, _) in h.mw.items():
            need = max(need, t + (XDL_RW if cls == "xdl" else SG_RW)[p] + 1)
        for k, (t, p) in h.mc.items():
            need = max(need, t + XDL_C_WAR[p] + 1)
        for k, t in h.sw.items():
            need = max(need, t + 5 + 1)
        for k, t in h.st.items():
            need = max(need, t + 2 + 1)
        if h.m0 is not None:
            need = max(need, h.m0 + 2)
        if h.ex is not None:
            need = max(need, h.ex + 6)
        if need > h.t:
            self.nop(need - h.t)

    def loop(self, body):
        st0 = copy.deepcopy(self.h)
        saved = self.lines
        m = (self.vnext, self.snext, self.nlabel, self.nops)
        self.lines = []
        body()
        st1 = self.h
        shift = st1.t - st0.t
        mg = copy.deepcopy(st0)
        for name in ("vw", "mw", "mc", "sw", "st"):
            d0 = getattr(mg, name)
            for k, e in getattr(st1, name).items():
                if isinstance(e, tuple):
                    e2 = (e[0] - shift,) + tuple(e[1:])
                    if k not in d0 or d0[k][0] < e2[0]:
                        d0[k] = e2
                else:
                    e2 = e - shift
                    if k not in d0 or d0[k] < e2:
                        d0[k] = e2
        for name in ("m0", "ex"):
            e = getattr(st1, name)
            if e is not None:
                e2 = e - shift
                o = getattr(mg, name)
                if o is None or o < e2:
                    setattr(mg, name, e2)
        self.h = mg
        self.lines = saved
        self.vnext, self.snext, self.nlabel, self.nops = m
        body()

    def waitcnt(self, vm=None, lgkm=None):
        parts = []
        if vm is not None:
            parts.append(f"vmcnt({vm})")
        if lgkm is not None:
            parts.append(f"lgkmcnt({lgkm})")
        self.lines.append("    s_waitcnt " + " ".join(parts))
        self.h.t += 1

    def srd(self, dst, base, nbytes):
        self("s_mov_b32", dst[0], base[0])
        self("s_and_b32", dst[1], base[1], "0xffff")
        self("s_mov_b32", dst[2], str(nbytes))
        self("s_mov_b32", dst[3], "0x00020000")

    def text(self):
        return "\n".join(self.lines) + "\n"


def kernel_header(name):
    return (f".globl {name}\n.p2align 8\n.type {name},@function\n{name}:\n")


def kernel_desc(name, vgpr, sgpr, accum=None):
    vg = max(vgpr, 8)
    acc = accum if accum is not None else (vg + 3) // 4 * 4
    return (f".p2align 6\n.amdhsa_kernel {name}\n"
            f"  .amdhsa_next_free_vgpr {vg}\n"
            f"  .amdhsa_next_free_sgpr {max(sgpr, 16)}\n"
            f"  .amdhsa_accum_offset {acc}\n"
            f"  .amdhsa_group_segment_fixed_size 0\n"
            f"  .amdhsa_kernarg_size 112\n"
            f"  .amdhsa_user_sgpr_count 2\n"
            f"  .amdhsa_user_sgpr_kernarg_segment_ptr 1\n"
            f"  .amdhsa_system_sgpr_workgroup_id_x 1\n"
            f"  .amdhsa_float_denorm_mode_32 3\n"
            f".end_amdhsa_kernel\n")
```

```python
import sys, importlib
from asmgen import *
HEADER = open('recurrent_scan__ssm_conv_s4d__geglu_ffn__prompt.s.ref').read().split('; Override launch geometry')[0]

def build(kernels, out):
    txt = HEADER
    for name, k, la in kernels:
        txt += f"; @launch kernel={name} grid=({la['grid']},1,1) block=({la['block']},1,1) lds={la['lds']}\n"
    txt += '.amdgcn_target "amdgcn-amd-amdhsa--gfx950"\n.text\n'
    seen = set()
    for name, k, la in kernels:
        if name in seen: continue
        seen.add(name)
        txt += kernel_header(name) + k.text()
    txt += '.section .rodata,"a"\n'
    seen = set()
    for name, k, la in kernels:
        if name in seen: continue
        seen.add(name)
        txt += kernel_desc(name, k.vmax, k.smax, getattr(k, 'accum', None))
        print(name, "vgpr", k.vmax, "sgpr", k.smax, "lines", len(k.lines), "nops", k.nops, file=sys.stderr)
    open(out, 'w').write(txt)
```

```python
import math
import struct
import numpy as np
from asmgen import *

L, D, N, F = 2048, 512, 128, 1792
WS_XN = 0
WS_XNT = 2 << 20
XT_PITCH = 4160
WS_KH = 5 << 20
WS_KL = 7 << 20
WS_KINV = 9 << 20
WS_H = 10 << 20
WS_YT = 18 << 20
WS_END = 21 << 20

LN_WGS = 64
KG_WGS = 256
K1_WGS = LN_WGS + KG_WGS
LN_PITCH = 1056
K1_LDS = 32 * LN_PITCH


def f32(x):
    return float(np.float32(x))


def split(x):
    hi = f32(x)
    lo = f32(x - hi)
    return hi, lo


L2E_HI, L2E_LO = split(math.log2(math.e))
I2P_HI, I2P_LO = split(1.0 / (2 * math.pi))
LN2 = math.log(2.0)


def load_kernargs(k):
    P = k.s(16, align=4)
    Q = k.s(8, align=4)
    R = k.s(4, align=4)
    k("s_load_dwordx16", P, "s[0:1]", "0")
    k("s_load_dwordx8", Q, "s[0:1]", "64")
    k("s_load_dwordx4", R, "s[0:1]", "96")
    ptr = {}
    names = ["u", "lar", "ai", "cr", "ci", "ldt", "dsk", "bx"]
    for j, nm in enumerate(names):
        ptr[nm] = P[2 * j:2 * j + 2]
    for j, nm in enumerate(["wg", "wu", "wd", "out"]):
        ptr[nm] = Q[2 * j:2 * j + 2]
    ptr["dbg"] = R[0:2]
    ptr["ws"] = R[2:4]
    return ptr


def ws_srd(k, ptr, off, nbytes):
    t = k.s(2)
    k("s_add_u32", t[0], ptr["ws"][0], str(off))
    k("s_addc_u32", t[1], ptr["ws"][1], "0")
    d = k.s(4)
    k.srd(d, t, nbytes)
    return d


def reduce64_sum(k, regs, tmps, op="v_add_f32"):
    for pat in ("quad_perm:[1,0,3,2]", "quad_perm:[2,3,0,1]", "row_half_mirror", "row_mirror"):
        for r in regs:
            k(op + "_dpp", r, r, r, mod=pat + " row_mask:0xf bank_mask:0xf")
    for sw in ("v_permlane16_swap_b32", "v_permlane32_swap_b32"):
        for r, t in zip(regs, tmps):
            k("v_mov_b32", t, r)
        for r, t in zip(regs, tmps):
            k(sw, r, t)
        for r, t in zip(regs, tmps):
            k(op, r, r, t)


def bf16r(k, dst, src):
    k("v_cvt_pk_bf16_f32", dst, src, src)
    k("v_lshlrev_b32", dst, 16, dst)


def exp_precise(k, dst, x, t0, t1, sc):
    k("v_mul_f32", t0, sc["l2e_hi"], x)
    k("v_fma_f32", t1, x, sc["l2e_hi"], neg(t0))
    k("v_fma_f32", t1, x, sc["l2e_lo"], t1)
    k("v_exp_f32", dst, t0)
    k("v_mul_f32", t1, sc["ln2"], t1)
    k("v_fma_f32", dst, dst, t1, dst)


def gen_k1(hilo=True):
    k = Asm()
    k.reset_regs(v0=1, s0=4)
    name = "k1_kernel"
    k("s_cmp_ge_u32", "s2", str(K1_WGS))
    k("s_cbranch_scc1", "K1_END")
    ptr = load_kernargs(k)
    lane = k.v()
    wv = k.v()
    swave = k.s()
    k("v_and_b32", lane, 63, "v0")
    k("v_lshrrev_b32", wv, 6, "v0")
    k("v_readfirstlane_b32", swave, wv)
    k.waitcnt(lgkm=0)
    k("s_cmp_ge_u32", "s2", str(LN_WGS))
    k.clear()
    k("s_cbranch_scc1", "K1_KGEN")
    base_mark = k.mark()
    sx = k.s(4)
    k.srd(sx, ptr["u"], L * D * 2)
    sxn = ws_srd(k, ptr, WS_XN, L * D * 2)
    sxt = ws_srd(k, ptr, WS_XNT, D * XT_PITCH)
    srow = k.s()
    k("s_lshl_b32", srow, "s2", 15)
    st = k.s()
    k("s_lshl_b32", st, swave, 13)
    k("s_add_u32", srow, srow, st)
    srow4 = k.s()
    k("s_add_u32", srow4, srow, 4096)
    voff = k.v()
    k("v_lshlrev_b32", voff, 4, lane)
    X = [k.v(4) for _ in range(8)]
    for r in range(8):
        k("buffer_load_dwordx4", X[r], voff, sx, srow if r < 4 else srow4, mod=f"offen offset:{(r & 3) * 1024}")
    sones = k.s()
    k("s_mov_b32", sones, "0x3f803f80")
    smask = k.s()
    k("s_mov_b32", smask, "0xffff0000")
    S = [k.v() for _ in range(8)]
    T = [k.v() for _ in range(8)]
    for r in range(8):
        k.waitcnt(vm=7 - r)
        k("v_dot2_f32_bf16", S[r], X[r][0], sones, 0)
        for j in range(1, 4):
            k("v_dot2_f32_bf16", S[r], X[r][j], sones, S[r])
    reduce64_sum(k, S, T)
    mean = S
    for r in range(8):
        k("v_mul_f32", mean[r], fl(1.0 / 512), S[r])
    Fv = [k.v(8) for _ in range(8)]
    SS = [k.v() for _ in range(8)]
    for r in range(8):
        for j in range(4):
            k("v_lshlrev_b32", Fv[r][2 * j], 16, X[r][j])
            k("v_and_b32", Fv[r][2 * j + 1], smask, X[r][j])
    for j in range(8):
        for r in range(8):
            k("v_sub_f32", T[r], Fv[r][j], mean[r])
            if j == 0:
                k("v_mul_f32", SS[r], T[r], T[r])
            else:
                k("v_fma_f32", SS[r], T[r], T[r], SS[r])
    reduce64_sum(k, SS, T)
    den = SS
    rc = [k.v() for _ in range(8)]
    for r in range(8):
        k("v_mul_f32", den[r], fl(1.0 / 512), SS[r])
    for r in range(8):
        bf16r(k, den[r], den[r])
    for r in range(8):
        k("v_add_f32", den[r], fl(1e-5), den[r])
    for r in range(8):
        bf16r(k, den[r], den[r])
    for r in range(8):
        k("v_sqrt_f32", den[r], den[r])
    for r in range(8):
        bf16r(k, den[r], den[r])
    for r in range(8):
        k("v_rcp_f32", rc[r], den[r])
    for r in range(8):
        bf16r(k, mean[r], mean[r])
    vlds = k.v()
    k("v_mul_u32_u24", vlds, LN_PITCH * 8, wv)
    k("v_add_u32", vlds, vlds, voff)
    H = k.v(4)
    a0, a1, q0, q1, e0, e1 = [k.v() for _ in range(6)]
    for r in range(8):
        O = X[r]
        for j in range(4):
            k("v_sub_f32", a0, Fv[r][2 * j], mean[r])
            k("v_sub_f32", a1, Fv[r][2 * j + 1], mean[r])
            k("v_cvt_pk_bf16_f32", a1, a0, a1)
            k("v_lshlrev_b32", a0, 16, a1)
            k("v_and_b32", a1, smask, a1)
            k("v_mul_f32", q0, a0, rc[r])
            k("v_mul_f32", q1, a1, rc[r])
            k("v_fma_f32", e0, neg(q0), den[r], a0)
            k("v_fma_f32", e1, neg(q1), den[r], a1)
            k("v_fma_f32", q0, e0, rc[r], q0)
            k("v_fma_f32", q1, e1, rc[r], q1)
            k("v_cvt_pk_bf16_f32", O[j], q0, q1)
            k("v_lshlrev_b32", q0, 16, O[j])
            k("v_and_b32", q1, smask, O[j])
            k("v_cvt_pkrtz_f16_f32", H[j], q0, q1)
        k("buffer_store_dwordx4", O, voff, sxn, srow if r < 4 else srow4, mod=f"offen offset:{(r & 3) * 1024}")
        k("ds_write_b128", vlds, H, mod=f"offset:{r * LN_PITCH}")
    k.waitcnt(lgkm=0)
    k("s_barrier")
    g = k.v(); i16 = k.v(); rr = k.v(); cc = k.v(); vrd = k.v(); vst = k.v()
    k("v_lshrrev_b32", g, 4, lane)
    k("v_and_b32", i16, 15, lane)
    k("v_lshrrev_b32", rr, 2, i16)
    k("v_and_b32", cc, 3, i16)
    k("v_lshl_add_u32", rr, g, 3, rr)
    k("v_mul_u32_u24", vrd, LN_PITCH, rr)
    k("v_lshl_add_u32", vrd, cc, 3, vrd)
    k("v_lshl_add_u32", vrd, wv, 8, vrd)
    k("v_lshl_add_u32", vst, wv, 7, i16)
    k("v_mul_u32_u24", vst, XT_PITCH, vst)
    k("v_lshl_add_u32", vst, g, 4, vst)
    sl0 = k.s()
    k("s_lshl_b32", sl0, "s2", 6)
    k("s_add_u32", sl0, sl0, 64)
    zz = k.v(4)
    for j in range(4):
        k("v_mov_b32", zz[j], 0)
    vzp = k.v(); vzt = k.v()
    k("v_lshrrev_b32", vzp, 2, "v0")
    k("v_mul_u32_u24", vzp, XT_PITCH, vzp)
    k("v_and_b32", vzt, 3, "v0")
    k("v_lshl_add_u32", vzp, vzt, 4, vzp)
    szp = k.s()
    k("s_mul_i32", szp, "s2", 8 * XT_PITCH)
    sex = k.s(2)
    k("v_cmp_gt_u32", "vcc", 32, "v0")
    k("s_and_saveexec_b64", sex, "vcc")
    k("s_cbranch_execz", "K1_NOZ")
    k("buffer_store_dwordx4", zz, vzp, sxt, szp, mod="offen")
    k.label("K1_NOZ")
    k("s_mov_b64", "exec", sex)
    TT = [k.v(4) for _ in range(8)]
    for b in range(8):
        k("ds_read_b64_tr_b16", TT[b][0:2], vrd, mod=f"offset:{b * 32}")
        k("ds_read_b64_tr_b16", TT[b][2:4], vrd, mod=f"offset:{b * 32 + 4 * LN_PITCH}")
    for b in range(8):
        k.waitcnt(lgkm=14 - 2 * b)
        k("buffer_store_dwordx4", TT[b], vst, sxt, sl0, mod="offen")
        if b < 7:
            k("v_add_u32", vst, 16 * XT_PITCH, vst)
    k("s_endpgm")

    k.release(base_mark)
    k.label("K1_KGEN")
    sc = {}
    for nm, val in (("l2e_hi", L2E_HI), ("l2e_lo", L2E_LO), ("ln2", LN2), ("i2p_hi", I2P_HI), ("i2p_lo", I2P_LO)):
        sc[nm] = k.s()
        k("s_mov_b32", sc[nm], fl(val))
    smask = k.s()
    k("s_mov_b32", smask, "0xffff0000")
    sd = k.s()
    shw = k.s()
    k("s_sub_u32", sd, "s2", LN_WGS)
    k("s_lshl_b32", sd, sd, 1)
    st = k.s()
    k("s_lshr_b32", st, swave, 1)
    k("s_add_u32", sd, sd, st)
    k("s_and_b32", shw, swave, 1)
    srds = {}
    for nm in ("lar", "ai", "cr", "ci"):
        srds[nm] = k.s(4)
        k.srd(srds[nm], ptr[nm], D * N * 2)
    sldt = k.s(4)
    k.srd(sldt, ptr["ldt"], D * 2)
    skh = ws_srd(k, ptr, WS_KH, D * L * 2)
    skl = ws_srd(k, ptr, WS_KL, D * L * 2)
    ski = ws_srd(k, ptr, WS_KINV, D * 4)
    i16 = k.v(); q = k.v()
    k("v_and_b32", i16, 15, lane)
    k("v_lshrrev_b32", q, 4, lane)
    soff = k.s()
    k("s_lshl_b32", soff, sd, 8)
    k("s_lshl_b32", st, shw, 7)
    k("s_add_u32", soff, soff, st)
    voff = k.v()
    k("v_lshlrev_b32", voff, 5, q)
    PAR = {}
    for nm in ("lar", "ai", "cr", "ci"):
        PAR[nm] = k.v(8)
        k("buffer_load_dwordx4", PAR[nm][0:4], voff, srds[nm], soff, mod="offen")
        k("buffer_load_dwordx4", PAR[nm][4:8], voff, srds[nm], soff, mod="offen offset:16")
    vz = k.v()
    k("v_mov_b32", vz, 0)
    ldt = k.v()
    k("s_lshl_b32", st, sd, 1)
    k("buffer_load_ushort", ldt, vz, sldt, st, mod="offen")
    pF = k.v()
    k("v_lshlrev_b32", pF, 3, i16)
    k("v_cvt_f32_u32", pF, pF)
    pR = [k.v() for _ in range(3)]
    t0, t1, t2 = k.v(), k.v(), k.v()
    k("v_lshlrev_b32", t0, 1, i16)
    k("v_add_u32", t0, 240, t0)
    k("v_and_b32", t1, 1, i16)
    k("v_lshlrev_b32", t1, 2, t1)
    k("v_bfe_u32", t2, i16, 1, 1)
    k("v_lshl_add_u32", t1, t2, 8, t1)
    k("v_add_u32", t1, 512, t1)
    k("v_cmp_gt_u32", "vcc", 8, i16)
    k("v_cndmask_b32", pR[0], t0, i16, "vcc")
    k("v_cmp_gt_u32", "vcc", 12, i16)
    k("v_cndmask_b32", pR[0], t1, pR[0], "vcc")
    k("v_add_u32", pR[1], 128, pR[0])
    k("v_lshlrev_b32", pR[2], 7, i16)
    k("v_add_u32", pR[2], 1024, pR[2])
    for r in range(3):
        k("v_cvt_f32_u32", pR[r], pR[r])
    dt = k.v(); ndl = k.v(); dt2 = k.v()
    k.waitcnt(vm=0)
    k("v_lshlrev_b32", ldt, 16, ldt)
    exp_precise(k, dt, ldt, t0, t1, sc)
    bf16r(k, dt, dt)
    k("v_mul_f32", ndl, sc["l2e_hi"], dt)
    k("v_sub_f32", ndl, 0, ndl)
    k("v_add_f32", dt2, dt, dt)
    Dacc = [k.v(4) for _ in range(3)]
    lar, ai, cr, ci = k.v(), k.v(), k.v(), k.v()
    ar2, whi, wlo = k.v(), k.v(), k.v()
    B1, B2 = k.v(), k.v()
    mag, rv, tt, sn, cs = [k.v() for _ in range(5)]
    Er = [k.v() for _ in range(3)]
    Ei = [k.v() for _ in range(3)]

    def cexp(p, outr, outi):
        k("v_mul_f32", mag, ar2, p)
        k("v_mul_f32", rv, whi, p)
        k("v_exp_f32", mag, mag)
        k("v_fma_f32", tt, whi, p, neg(rv))
        k("v_fma_f32", tt, wlo, p, tt)
        k("v_fract_f32", rv, rv)
        k("v_add_f32", rv, rv, tt)
        k("v_sin_f32", sn, rv)
        k("v_cos_f32", cs, rv)
        k("v_mul_f32", outi, mag, sn)
        k("v_mul_f32", outr, mag, cs)

    for s in range(16):
        for nm, dst in (("lar", lar), ("ai", ai), ("cr", cr), ("ci", ci)):
            src = PAR[nm][s >> 1]
            if s & 1:
                k("v_and_b32", dst, smask, src)
            else:
                k("v_lshlrev_b32", dst, 16, src)
        exp_precise(k, ar2, lar, t0, t1, sc)
        bf16r(k, ar2, ar2)
        k("v_mul_f32", ar2, ar2, ndl)
        k("v_mul_f32", ai, ai, dt)
        k("v_mul_f32", whi, sc["i2p_hi"], ai)
        k("v_fma_f32", wlo, ai, sc["i2p_hi"], neg(whi))
        k("v_fma_f32", wlo, ai, sc["i2p_lo"], wlo)
        k("v_mul_f32", cr, cr, dt2)
        k("v_mul_f32", ci, ci, dt2)
        cexp(pF, t0, t1)
        k("v_mul_f32", B1, ci, t1)
        k("v_fma_f32", B1, cr, t0, neg(B1))
        k("v_mul_f32", B2, cr, t1)
        k("v_fma_f32", B2, neg(ci), t0, neg(B2))
        for r in range(3):
            cexp(pR[r], Er[r], Ei[r])
        for r in range(3):
            k("v_mfma_f32_16x16x4_f32", Dacc[r], Er[r], B1, Dacc[r] if s else 0)
        for r in range(3):
            k("v_mfma_f32_16x16x4_f32", Dacc[r], Ei[r], B2, Dacc[r])
    sreg = k.s()
    k("s_lshr_b32", sreg, swave, 1)
    k("s_lshl_b32", sreg, sreg, 13)
    vb = k.v()
    k("v_mul_u32_u24", vb, 48, lane)
    k("v_add_u32", vb, sreg, vb)
    k("s_cmp_eq_u32", shw, 0)
    k.clear()
    k("s_cbranch_scc1", "K1_KG_A")
    for r in range(3):
        k("ds_write_b128", vb, Dacc[r], mod=f"offset:{16 * r}")
    k.waitcnt(lgkm=0)
    k("s_barrier")
    k("s_branch", "K1_KG_B")
    k.label("K1_KG_A")
    k("s_barrier")
    P2 = [k.v(4) for _ in range(3)]
    for r in range(3):
        k("ds_read_b128", P2[r], vb, mod=f"offset:{16 * r}")
    k.waitcnt(lgkm=0)
    for r in range(3):
        for j in range(4):
            k("v_add_f32", Dacc[r][j], Dacc[r][j], P2[r][j])
    mx = k.v(); mt = k.v()
    k("v_max3_f32", mx, absm(Dacc[0][0]), absm(Dacc[0][1]), absm(Dacc[0][2]))
    vals = [Dacc[r][j] for r in range(3) for j in range(4)][3:]
    for a in range(0, 8, 2):
        k("v_max3_f32", mx, absm(vals[a]), absm(vals[a + 1]), mx)
    k("v_max_f32", mx, absm(vals[8]), mx)
    reduce64_sum(k, [mx], [mt], op="v_max_f32")
    scl = k.v(); inv = k.v()
    k("v_bfe_u32", t0, mx, 23, 8)
    k("v_sub_u32", t1, 268, t0)
    k("v_mov_b32", t2, 240)
    k("v_med3_i32", t1, t1, 14, t2)
    k("v_lshlrev_b32", scl, 23, t1)
    k("v_sub_u32", t1, 254, t1)
    k("v_lshlrev_b32", inv, 23, t1)
    k("s_lshl_b32", st, sd, 2)
    k("buffer_store_dword", inv, vz, ski, st, mod="offen")
    ub = k.v(); us = k.v(); uadd = k.v()
    k("v_lshlrev_b32", t0, 2, q)
    k("v_lshl_add_u32", t0, i16, 3, t0)
    k("v_lshlrev_b32", t1, 2, i16)
    k("v_add_u32", t1, 256, t1)
    k("v_mov_b32", t2, 384)
    k("v_lshl_add_u32", t2, i16, 1, t2)
    k("v_cmp_gt_u32", "vcc", 2, q)
    k("v_cndmask_b32", ub, t1, t0, "vcc")
    k("v_mov_b32", uadd, 64)
    k("v_mov_b32", t0, 128)
    k("v_cndmask_b32", uadd, uadd, t0, "vcc")
    k("v_cmp_gt_u32", "vcc", 3, q)
    k("v_cndmask_b32", ub, t2, ub, "vcc")
    k("v_mov_b32", t0, 32)
    k("v_cndmask_b32", uadd, t0, uadd, "vcc")
    jx = k.v()
    k("v_mov_b32", t0, 62)
    k("v_mov_b32", t1, 0)
    k("v_cndmask_b32", jx, t0, t1, "vcc")
    k("v_lshlrev_b32", ub, 1, ub)
    k("v_add_u32", ub, sreg, ub)
    k("v_lshlrev_b32", uadd, 1, uadd)
    k("v_lshlrev_b32", jx, 1, jx)
    a_t0lo = ub
    a_t0hi = k.v(); a_t1lo = k.v(); a_t1hi = k.v(); a_t2 = k.v()
    k("v_add_u32", a_t0hi, ub, jx)
    k("v_add_u32", a_t1lo, ub, uadd)
    k("v_add_u32", a_t1hi, a_t1lo, jx)
    k("v_lshl_add_u32", a_t2, q, 6, i16)
    k("v_lshlrev_b32", a_t2, 1, a_t2)
    k("v_add_u32", a_t2, sreg, a_t2)
    hv = k.v(); lv = k.v()
    for r in range(3):
        for j in range(4):
            k("v_mul_f32", t0, Dacc[r][j], scl)
            k("v_cvt_f16_f32", hv, t0)
            if r < 2:
                addr = ((a_t0lo, a_t0hi), (a_t1lo, a_t1hi))[r][j >> 1]
                off = 2 * j
            else:
                addr = a_t2
                off = 1024 + 32 * j
            k("ds_write_b16", addr, hv, mod=f"offset:{3072 + off}")
            if hilo:
                k("v_cvt_f32_f16", t1, hv)
                k("v_sub_f32", t1, t0, t1)
                k("v_cvt_f16_f32", lv, t1)
                k("ds_write_b16", addr, lv, mod=f"offset:{4608 + off}")
    k.waitcnt(lgkm=0)
    k.clear()
    k.label("K1_KG_B")
    k("s_barrier")
    vl = k.v()
    k("v_lshlrev_b32", vl, 4, lane)
    k("s_lshl_b32", st, shw, 10)
    k("v_add_u32", vl, st, vl)
    OH = k.v(8); OL = k.v(8)
    RH = k.v(16); RL = k.v(16)
    ua = [k.v() for _ in range(4)]
    for e in range(16):
        grp, j = e >> 3, e & 7
        pos = grp * 8 + (7 - j)
        a = ua[e & 3]
        k("v_add_u32", t0, e, vl)
        k("v_cvt_f32_u32", t1, t0)
        k("v_cvt_pk_bf16_f32", t1, t1, t1)
        k("v_and_b32", t1, "0xffff", t1)
        k("v_subrev_u32", t1, 17024, t1)
        k("v_cmp_gt_u32", "vcc", 128, t0)
        k("v_cndmask_b32", t1, t1, t0, "vcc")
        k("v_lshlrev_b32", a, 1, t1)
        k("v_add_u32", a, sreg, a)
        k("ds_read_u16", RH[pos], a, mod="offset:3072")
        if hilo:
            k("ds_read_u16", RL[pos], a, mod="offset:4608")
    k.waitcnt(lgkm=0)
    for j in range(8):
        k("v_lshl_or_b32", OH[j], RH[2 * j + 1], 16, RH[2 * j])
        if hilo:
            k("v_lshl_or_b32", OL[j], RL[2 * j + 1], 16, RL[2 * j])
    vst = k.v()
    k("v_lshlrev_b32", vst, 1, vl)
    k("s_lshl_b32", st, sd, 12)
    k.waitcnt(lgkm=0)
    k("buffer_store_dwordx4", OH[0:4], vst, skh, st, mod="offen")
    k("buffer_store_dwordx4", OH[4:8], vst, skh, st, mod="offen offset:16")
    if hilo:
        k("buffer_store_dwordx4", OL[0:4], vst, skl, st, mod="offen")
        k("buffer_store_dwordx4", OL[4:8], vst, skl, st, mod="offen offset:16")
    k.label("K1_END")
    k("s_endpgm")
    return name, k, dict(grid=K1_WGS, block=256, lds=K1_LDS)
```

```python
import math
from asmgen import *
from k1 import *

G1_LDS = 65536
GK1 = -2.0 * math.log2(math.e) * math.sqrt(2.0 / math.pi)
GK2 = GK1 * 0.044715


def gemm1_body(k, ptr, swg, lane, wv, swave):
    sxn = ws_srd(k, ptr, WS_XN, L * D * 2)
    sh = ws_srd(k, ptr, WS_H, L * F * 2)
    smat = k.s(); sw1 = k.s(); st = k.s()
    k("s_lshr_b32", smat, swave, 1)
    k("s_and_b32", sw1, swave, 1)
    sW = k.s(4)
    k("s_cmp_eq_u32", smat, 0)
    k("s_cselect_b32", sW[0], ptr["wg"][0], ptr["wu"][0])
    k("s_cselect_b32", sW[1], ptr["wg"][1], ptr["wu"][1])
    k("s_and_b32", sW[1], sW[1], "0xffff")
    k("s_mov_b32", sW[2], str(D * F * 2))
    k("s_mov_b32", sW[3], "0x00020000")
    smt = k.s(); snt = k.s()
    k("s_lshr_b32", smt, swg, 4)
    k("s_and_b32", snt, swg, 15)
    sn0b = k.s()
    k("s_mul_i32", sn0b, snt, 224)
    i16 = k.v(); kg = k.v()
    k("v_and_b32", i16, 15, lane)
    k("v_lshrrev_b32", kg, 4, lane)
    vd = [k.v(), k.v()]
    t0, t1, t2 = k.v(), k.v(), k.v()
    k("v_lshrrev_b32", t0, 1, i16)
    k("v_xor_b32", t0, t0, kg)
    k("v_and_b32", t2, 1, i16)
    k("v_lshlrev_b32", t2, 4, t2)
    k("v_mul_u32_u24", t1, 3584, kg)
    k("v_add_u32", t2, t2, t1)
    for b in range(2):
        if b:
            k("v_xor_b32", t0, 4, t0)
        k("v_cmp_eq_u32", "vcc", 7, t0)
        k("v_cndmask_b32", t1, t0, 0, "vcc") if False else None
        k("v_mov_b32", t1, 0)
        k("v_cndmask_b32", t1, t0, t1, "vcc")
        k("v_lshl_add_u32", vd[b], t1, 5, t2)
    sgo = k.s()
    k("s_mul_i32", sgo, sw1, 32 * 3584)
    k("s_add_u32", sgo, sgo, sn0b)
    slo = k.s()
    k("s_lshl_b32", slo, smat, 14)
    k("s_lshl_b32", st, sw1, 13)
    k("s_add_u32", slo, slo, st)
    sso = k.s()

    def dma(stage):
        buf = stage & 1
        for j in range(8):
            k("s_add_u32", sso, sgo, str((stage * 64 + 4 * j) * 3584))
            k("s_add_u32", "m0", slo, str(buf * 32768 + 4 * j * 256))
            k("buffer_load_dwordx4", vd[(j >> 1) & 1], sW, sso, mod="offen lds")

    vx = [k.v(), k.v()]
    srow = k.s()
    k("s_lshl_b32", srow, smt, 7)
    k("s_lshl_b32", st, swave, 5)
    k("s_add_u32", srow, srow, st)
    k("v_add_u32", t0, srow, i16)
    k("v_lshlrev_b32", t1, 10, t0)
    k("v_lshl_add_u32", vx[0], kg, 4, t1)
    k("v_add_u32", vx[1], 16 * 1024, vx[0])
    X = [[[k.v(4) for _ in range(2)] for _ in range(2)] for _ in range(2)]

    def xload(stage):
        for ks in range(2):
            for mt in range(2):
                k("buffer_load_dwordx4", X[stage & 1][ks][mt], vx[mt], sxn, 0, mod=f"offen offset:{(stage * 2 + ks) * 64}")

    dma(0)
    xload(0)
    vh = [k.v(), k.v()]
    k("v_mul_u32_u24", t1, 3584, t0)
    k("v_lshl_add_u32", t1, kg, 3, t1)
    k("v_add_u32", vh[0], sn0b, t1)
    k("v_add_u32", vh[1], 16 * 3584, vh[0])
    va = [k.v() for _ in range(7)]
    rr = k.v(); gg = k.v()
    k("v_lshrrev_b32", rr, 2, i16)
    k("v_and_b32", gg, 1, kg)
    k("v_lshl_add_u32", gg, gg, 2, rr)
    k("v_lshl_add_u32", t0, kg, 3, rr)
    k("v_lshlrev_b32", t0, 8, t0)
    k("v_and_b32", t1, 3, i16)
    k("v_lshl_add_u32", t0, t1, 3, t0)
    for t in range(7):
        k("v_xor_b32", t1, t, gg)
        k("v_lshl_add_u32", va[t], t1, 5, t0)
    ACC = [[[k.v(4) for _ in range(2)] for _ in range(7)] for _ in range(2)]
    R = 6
    WF = [k.v(4) for _ in range(R)]
    items = [(ks, mat, t) for ks in range(2) for t in range(7) for mat in range(2)]
    for s in range(8):
        buf = s & 1
        k.waitcnt(vm=0)
        k("s_barrier")
        if s < 7:
            dma(s + 1)
            xload(s + 1)

        def rd(i):
            ks, mat, t = items[i]
            off = buf * 32768 + mat * 16384 + ks * 8192
            k("ds_read_b64_tr_b16", WF[i % R][0:2], va[t], mod=f"offset:{off}")
            k("ds_read_b64_tr_b16", WF[i % R][2:4], va[t], mod=f"offset:{off + 1024}")
        for i in range(R - 1):
            rd(i)
        for i, (ks, mat, t) in enumerate(items):
            if i + R - 1 < len(items):
                rd(i + R - 1)
                k.waitcnt(lgkm=2 * (R - 1))
            else:
                k.waitcnt(lgkm=2 * (len(items) - 1 - i))
            for mt in range(2):
                first = (s == 0 and ks == 0)
                k("v_mfma_f32_16x16x32_bf16", ACC[mat][t][mt], WF[i % R], X[buf][ks][mt], 0 if first else ACC[mat][t][mt])
    smask = k.s(); sk1 = k.s(); sk2 = k.s()
    k("s_mov_b32", smask, "0xffff0000")
    k("s_mov_b32", sk1, fl(GK1))
    k("s_mov_b32", sk2, fl(GK2))
    xg = [k.v() for _ in range(4)]; xu = [k.v() for _ in range(4)]; e = [k.v() for _ in range(4)]
    O = [k.v(2), k.v(2)]
    n = 0
    for mt in range(2):
        for t in range(7):
            G = ACC[0][t][mt]; U = ACC[1][t][mt]
            for p in range(2):
                k("v_cvt_pk_bf16_f32", xg[2 * p + 1], G[2 * p], G[2 * p + 1])
                k("v_cvt_pk_bf16_f32", xu[2 * p + 1], U[2 * p], U[2 * p + 1])
                k("v_lshlrev_b32", xg[2 * p], 16, xg[2 * p + 1])
                k("v_and_b32", xg[2 * p + 1], smask, xg[2 * p + 1])
                k("v_lshlrev_b32", xu[2 * p], 16, xu[2 * p + 1])
                k("v_and_b32", xu[2 * p + 1], smask, xu[2 * p + 1])
            for r in range(4):
                k("v_mul_f32", e[r], xg[r], xg[r])
            for r in range(4):
                k("v_fma_f32", e[r], e[r], sk2, sk1) if False else None
                k("v_mul_f32", e[r], sk2, e[r])
            for r in range(4):
                k("v_add_f32", e[r], sk1, e[r])
            for r in range(4):
                k("v_mul_f32", e[r], e[r], xg[r])
            for r in range(4):
                k("v_exp_f32", e[r], e[r])
            for r in range(4):
                k("v_add_f32", e[r], 1.0, e[r])
            for r in range(4):
                k("v_rcp_f32", e[r], e[r])
            for r in range(4):
                k("v_mul_f32", e[r], e[r], xg[r])
            for p in range(2):
                k("v_cvt_pk_bf16_f32", e[2 * p + 1], e[2 * p], e[2 * p + 1])
                k("v_lshlrev_b32", e[2 * p], 16, e[2 * p + 1])
                k("v_and_b32", e[2 * p + 1], smask, e[2 * p + 1])
            for r in range(4):
                k("v_mul_f32", e[r], e[r], xu[r])
            o = O[n & 1]; n += 1
            k("v_cvt_pk_bf16_f32", o[0], e[0], e[1])
            k("v_cvt_pk_bf16_f32", o[1], e[2], e[3])
            k("buffer_store_dwordx2", o, vh[mt], sh, 0, mod=f"offen offset:{t * 32}")


def gen_k2():
    k = Asm()
    k.reset_regs(v0=1, s0=4)
    name = "k2_kernel"
    k("s_cmp_ge_u32", "s2", "256")
    k("s_cbranch_scc1", "K2_END")
    ptr = load_kernargs(k)
    lane = k.v(); wv = k.v(); swave = k.s()
    k("v_and_b32", lane, 63, "v0")
    k("v_lshrrev_b32", wv, 6, "v0")
    k("v_readfirstlane_b32", swave, wv)
    k.waitcnt(lgkm=0)
    swg = k.s()
    k("s_mov_b32", swg, "s2")
    gemm1_body(k, ptr, swg, lane, wv, swave)
    k.label("K2_END")
    k("s_endpgm")
    return name, k, dict(grid=256, block=256, lds=G1_LDS)
```

```python
from asmgen import *
from k1 import *

CPITCH = 4256
CONV_LDS = 2 * 8 * CPITCH


def conv_body(k, ptr, swg, lane, wv, swave, hilo=True):
    sxt = ws_srd(k, ptr, WS_XNT, D * XT_PITCH)
    skh = ws_srd(k, ptr, WS_KH, D * L * 2)
    skl = ws_srd(k, ptr, WS_KL, D * L * 2)
    ski = ws_srd(k, ptr, WS_KINV, D * 4)
    syt = ws_srd(k, ptr, WS_YT, D * L * 2)
    sd = k.s(); sp = k.s(); st = k.s()
    k("s_lshl_b32", sd, swg, 1)
    k("s_lshr_b32", st, swave, 1)
    k("s_add_u32", sd, sd, st)
    k("s_and_b32", sp, swave, 1)
    i16 = k.v(); kg = k.v()
    k("v_and_b32", i16, 15, lane)
    k("v_lshrrev_b32", kg, 4, lane)
    vk = k.v()
    k("v_lshlrev_b32", vk, 6, i16)
    k("v_lshl_add_u32", vk, kg, 4, vk)
    sk = k.s()
    k("s_lshl_b32", sk, sd, 12)
    KH = [k.v(4) for _ in range(4)]
    KL = [k.v(4) for _ in range(4)] if hilo else None
    for t in range(4):
        k("buffer_load_dwordx4", KH[t], vk, skh, sk, mod=f"offen offset:{t * 1024}")
    if hilo:
        for t in range(4):
            k("buffer_load_dwordx4", KL[t], vk, skl, sk, mod=f"offen offset:{t * 1024}")
    vz = k.v()
    k("v_mov_b32", vz, 0)
    kinv = k.v()
    k("s_lshl_b32", st, sd, 2)
    k("buffer_load_dword", kinv, vz, ski, st, mod="offen")
    m0 = k.mark()
    sx = k.s()
    k("s_mul_i32", sx, sd, XT_PITCH)
    k("s_lshl_b32", st, sp, 3)
    k("s_add_u32", sx, sx, st)
    va = k.v()
    k("v_lshlrev_b32", va, 4, lane)
    W = [k.v(8) for _ in range(5)]
    sx4 = k.s()
    k("s_add_u32", sx4, sx, 4096)
    for it in range(5):
        so = sx if it < 4 else sx4
        k("buffer_load_dwordx4", W[it][0:4], va, sxt, so, mod=f"offen offset:{(it & 3) * 1024}")
        k("buffer_load_dwordx4", W[it][4:8], va, sxt, so, mod=f"offen offset:{(it & 3) * 1024 + 16}")
    slb = k.s()
    k("s_mul_i32", slb, swave, 4 * CPITCH)
    vw = k.v()
    k("v_add_u32", vw, slb, va)
    T1 = k.v(4); T2 = k.v(4); T3 = k.v(4)
    sex = k.s(2)
    for it in range(5):
        k.waitcnt(vm=2 * (4 - it))
        w = W[it]
        if it == 4:
            k("v_cmp_gt_u32", "vcc", 4, lane)
            k("s_and_saveexec_b64", sex, "vcc")
        for j in range(4):
            k("v_alignbit_b32", T1[j], w[j + 1], w[j], 16)
            k("v_mov_b32", T2[j], w[j + 1])
            k("v_alignbit_b32", T3[j], w[j + 2], w[j + 1], 16)
        k("ds_write_b128", vw, w[0:4], mod=f"offset:{it * 1024}")
        k("ds_write_b128", vw, T1, mod=f"offset:{it * 1024 + CPITCH}")
        k("ds_write_b128", vw, T2, mod=f"offset:{it * 1024 + 2 * CPITCH}")
        k("ds_write_b128", vw, T3, mod=f"offset:{it * 1024 + 3 * CPITCH}")
        if it == 4:
            k("s_mov_b64", "exec", sex)
    k.release(m0)
    vr = k.v(); t0 = k.v(); t1 = k.v()
    k("v_add_u32", t0, 1, i16)
    k("v_and_b32", t1, 7, t0)
    k("v_mul_u32_u24", vr, CPITCH, t1)
    k("v_lshrrev_b32", t0, 3, t0)
    k("v_sub_u32", t0, t0, kg)
    k("v_add_u32", t0, 3, t0)
    k("v_lshl_add_u32", vr, t0, 4, vr)
    k("s_lshr_b32", st, swave, 1)
    k("s_mul_i32", st, st, 8 * CPITCH)
    sb2 = k.s()
    k("s_lshl_b32", sb2, sp, 5)
    k("s_add_u32", st, st, sb2)
    k("v_add_u32", vr, st, vr)
    k.waitcnt(lgkm=0)
    k("s_barrier")
    Y = [k.v(4) for _ in range(4)]
    Z = [[k.v(4) for _ in range(4)] for _ in range(2)]
    NA = 8
    A = [k.v(4) for _ in range(NA)]
    seq = [(c0, c1) for c0 in range(16) for c1 in range(4)]
    PF = 6

    def rd(idx):
        c0, c1 = seq[idx]
        k("ds_read_b128", A[idx % NA], vr, mod=f"offset:{64 * (16 * c1 + c0)}")

    def shift_add(c0):
        z = Z[c0 & 1]
        for T in range(4):
            for r in range(4):
                if c0 == 0:
                    k("v_mov_b32", Y[T][r], z[T][r])
                else:
                    k("v_add_f32_dpp", Y[T][r], z[T][r], Y[T][r], mod=f"row_shr:{c0} row_mask:0xf bank_mask:0xf")
                    if T > 0:
                        k("v_add_f32_dpp", Y[T][r], z[T - 1][r], Y[T][r], mod=f"row_shl:{16 - c0} row_mask:0xf bank_mask:0xf")

    for idx in range(PF):
        rd(idx)
    k.waitcnt(vm=0)
    for idx, (c0, c1) in enumerate(seq):
        if idx + PF < len(seq):
            rd(idx + PF)
            k.waitcnt(lgkm=PF)
        else:
            k.waitcnt(lgkm=len(seq) - 1 - idx)
        z = Z[c0 & 1]
        a = A[idx % NA]
        for t in range(4 - c1):
            T = c1 + t
            k("v_mfma_f32_16x16x32_f16", z[T], a, KH[t], z[T] if c1 else 0)
            if hilo:
                k("v_mfma_f32_16x16x32_f16", z[T], a, KL[t], z[T])
        if c1 == 1 and c0 > 0:
            shift_add(c0 - 1)
    shift_add(15)
    vo = k.v()
    k("v_lshlrev_b32", vo, 6, i16)
    k("v_lshl_add_u32", vo, kg, 3, vo)
    k("v_add_u32", vo, sb2, vo)
    O = [k.v(2) for _ in range(4)]
    for T in range(4):
        for r in range(4):
            k("v_mul_f32", Y[T][r], Y[T][r], kinv)
        k("v_cvt_pk_bf16_f32", O[T][0], Y[T][0], Y[T][1])
        k("v_cvt_pk_bf16_f32", O[T][1], Y[T][2], Y[T][3])
        k("buffer_store_dwordx2", O[T], vo, syt, sk, mod=f"offen offset:{T * 1024}")


def gen_k3(hilo=True):
    k = Asm()
    k.reset_regs(v0=1, s0=4)
    name = "k3_kernel"
    k("s_cmp_ge_u32", "s2", "256")
    k("s_cbranch_scc1", "K3_END")
    ptr = load_kernargs(k)
    lane = k.v(); wv = k.v(); swave = k.s()
    k("v_and_b32", lane, 63, "v0")
    k("v_lshrrev_b32", wv, 6, "v0")
    k("v_readfirstlane_b32", swave, wv)
    k.waitcnt(lgkm=0)
    swg = k.s()
    k("s_mov_b32", swg, "s2")
    conv_body(k, ptr, swg, lane, wv, swave, hilo)
    k.label("K3_END")
    k("s_endpgm")
    return name, k, dict(grid=256, block=256, lds=CONV_LDS)
```

```python
import math
from asmgen import *
from k1 import *

RP = 272
G2_PART = 64 * RP
YP = 144
G2_Y = 4 * G2_PART
G2_LDS = G2_Y + 64 * YP
NLOG2E = -math.log2(math.e)


def gemm2_body(k, ptr, swg, lane, wv, swave):
    sh = ws_srd(k, ptr, WS_H, L * F * 2)
    sxn = ws_srd(k, ptr, WS_XN, L * D * 2)
    syt = ws_srd(k, ptr, WS_YT, L * D * 2)
    sW = k.s(4); k.srd(sW, ptr["wd"], F * D * 2)
    sx = k.s(4); k.srd(sx, ptr["u"], L * D * 2)
    sdk = k.s(4); k.srd(sdk, ptr["dsk"], D * 2)
    so = k.s(4); k.srd(so, ptr["out"], L * D * 2)
    st = k.s(); slt = k.s(); sdt = k.s()
    k("s_and_b32", slt, swg, 7)
    k("s_lshl_b32", slt, slt, 2)
    k("s_lshr_b32", st, swg, 6)
    k("s_add_u32", slt, slt, st)
    k("s_lshr_b32", sdt, swg, 3)
    k("s_and_b32", sdt, sdt, 7)
    i16 = k.v(); kg = k.v()
    k("v_and_b32", i16, 15, lane)
    k("v_lshrrev_b32", kg, 4, lane)
    t0, t1, t2 = k.v(), k.v(), k.v()
    vd = [k.v(), k.v()]
    k("v_bfe_u32", t0, lane, 1, 2)
    k("v_and_b32", t1, 1, kg)
    k("v_xor_b32", t0, t0, t1)
    k("v_and_b32", t2, 1, lane)
    k("v_lshlrev_b32", t2, 4, t2)
    k("v_lshrrev_b32", t1, 3, lane)
    k("v_lshl_add_u32", t2, t1, 10, t2)
    k("v_lshl_add_u32", vd[0], t0, 5, t2)
    k("v_xor_b32", t0, 2, t0)
    k("v_lshl_add_u32", vd[1], t0, 5, t2)
    sgo = k.s()
    k("s_mul_i32", sgo, swave, 448 * 1024)
    k("s_lshl_b32", st, sdt, 7)
    k("s_add_u32", sgo, sgo, st)
    slo = k.s()
    k("s_lshl_b32", slo, swave, 14)
    sso = k.s()
    vh = [k.v() for _ in range(4)]
    sl0 = k.s()
    k("s_lshl_b32", sl0, slt, 6)
    k("v_add_u32", t0, sl0, i16)
    k("v_mul_u32_u24", t0, 3584, t0)
    k("v_lshl_add_u32", t0, kg, 4, t0)
    k("s_mul_i32", st, swave, 896)
    k("v_add_u32", vh[0], st, t0)
    for lt in range(1, 4):
        k("v_add_u32", vh[lt], 16 * 3584, vh[lt - 1])
    NS = 4
    HF = [[k.v(4) for _ in range(4)] for _ in range(NS)]

    def loads(s):
        for j in range(4):
            k("s_add_u32", sso, sgo, str((s * 32 + 8 * j) * 1024))
            k("s_add_u32", "m0", slo, str((s % NS) * 4096 + j * 1024))
            k("buffer_load_dwordx4", vd[j & 1], sW, sso, mod="offen lds")
        for lt in range(4):
            k("buffer_load_dwordx4", HF[s % NS][lt], vh[lt], sh, 0, mod=f"offen offset:{s * 64}")

    ve = k.v(); vy = k.v(); vdk = k.v()
    k("v_lshrrev_b32", t0, 2, "v0")
    k("v_and_b32", t1, 3, "v0")
    k("v_add_u32", t2, sl0, t0)
    k("v_lshlrev_b32", ve, 10, t2)
    k("v_lshl_add_u32", ve, t1, 5, ve)
    k("s_lshl_b32", st, sdt, 7)
    k("v_add_u32", ve, st, ve)
    k("v_lshlrev_b32", vdk, 5, t1)
    k("v_add_u32", vdk, st, vdk)
    sd0 = k.s()
    k("s_lshl_b32", sd0, sdt, 6)
    k("v_add_u32", t2, sd0, t0)
    k("v_lshlrev_b32", vy, 12, t2)
    k("v_lshl_add_u32", vy, t1, 5, vy)
    k("s_lshl_b32", st, slt, 7)
    k("v_add_u32", vy, st, vy)
    EX = k.v(8); EN = k.v(8); ED = k.v(8); EY = k.v(8)
    for (R_, v_, s_) in ((EX, ve, sx), (EN, ve, sxn), (ED, vdk, sdk), (EY, vy, syt)):
        k("buffer_load_dwordx4", R_[0:4], v_, s_, 0, mod="offen")
        k("buffer_load_dwordx4", R_[4:8], v_, s_, 0, mod="offen offset:16")
    vyl = k.v()
    k("v_mul_u32_u24", vyl, YP, t0)
    k("v_lshl_add_u32", vyl, t1, 5, vyl)
    k("v_add_u32", vyl, G2_Y, vyl)
    for s in range(3):
        loads(s)
    va = [k.v() for _ in range(4)]
    rr = k.v(); gg = k.v()
    k("v_lshrrev_b32", rr, 2, i16)
    k("v_lshrrev_b32", gg, 1, rr)
    k("v_and_b32", t1, 1, kg)
    k("v_lshl_add_u32", gg, t1, 1, gg)
    k("v_lshl_add_u32", t0, kg, 3, rr)
    k("v_lshlrev_b32", t0, 7, t0)
    k("v_and_b32", t1, 3, i16)
    k("v_lshl_add_u32", t0, t1, 3, t0)
    k("v_add_u32", t0, slo, t0)
    for t in range(4):
        k("v_xor_b32", t1, t, gg)
        k("v_lshl_add_u32", va[t], t1, 5, t0)
    ACC = [[k.v(4) for _ in range(4)] for _ in range(4)]
    WF = [[k.v(4) for _ in range(4)] for _ in range(2)]

    def rd(s):
        for t in range(4):
            off = (s % NS) * 4096
            k("ds_read_b64_tr_b16", WF[s & 1][t][0:2], va[t], mod=f"offset:{off}")
            k("ds_read_b64_tr_b16", WF[s & 1][t][2:4], va[t], mod=f"offset:{off + 512}")
    NSTEP = 14
    k.waitcnt(vm=16)
    rd(0)
    for s in range(NSTEP):
        if s + 3 < NSTEP:
            loads(s + 3)
        newer = min(s + 3, NSTEP - 1) - (s + 1)
        if s + 1 < NSTEP:
            k.waitcnt(vm=8 * newer)
            rd(s + 1)
            k.waitcnt(lgkm=8)
        else:
            k.waitcnt(vm=0, lgkm=0)
        for dt in range(4):
            for lt in range(4):
                k("v_mfma_f32_16x16x32_bf16", ACC[dt][lt], WF[s & 1][dt], HF[s % NS][lt], ACC[dt][lt] if s else 0)
    k("s_barrier")
    vp = k.v()
    k("v_mul_u32_u24", vp, RP, i16)
    k("v_lshl_add_u32", vp, kg, 4, vp)
    k("s_mul_i32", st, swave, G2_PART)
    k("v_add_u32", vp, st, vp)
    for dt in range(4):
        for lt in range(4):
            k("ds_write_b128", vp, ACC[dt][lt], mod=f"offset:{lt * 16 * RP + dt * 64}")
    k("ds_write_b128", vyl, EY[0:4])
    k("ds_write_b128", vyl, EY[4:8], mod="offset:16")
    k.waitcnt(lgkm=0)
    k("s_barrier")
    vq = k.v()
    k("v_lshrrev_b32", t0, 2, "v0")
    k("v_and_b32", t1, 3, "v0")
    k("v_mul_u32_u24", vq, RP, t0)
    k("v_lshl_add_u32", vq, t1, 6, vq)
    PS = HF
    for w in range(4):
        for c in range(4):
            k("ds_read_b128", PS[w][c], vq, mod=f"offset:{w * G2_PART + c * 16}")
    vyr = k.v()
    k("v_mul_u32_u24", vyr, 16 * YP, t1)
    k("v_lshl_add_u32", vyr, t0, 1, vyr)
    k("v_add_u32", vyr, G2_Y, vyr)
    YVl = [WF[0][e >> 2][e & 3] for e in range(16)]
    class _Y:
        def __getitem__(self, e):
            return YVl[e]
    YV = _Y()
    for e in range(16):
        k("ds_read_u16", YV[e], vyr, mod=f"offset:{e * YP}")
    k.waitcnt(lgkm=0)
    smask = k.s(); snl = k.s()
    k("s_mov_b32", smask, "0xffff0000")
    k("s_mov_b32", snl, fl(NLOG2E))
    OUT = EY
    f = [WF[1][0][r] for r in range(4)]; g = [WF[1][1][r] for r in range(4)]; a = [WF[1][2][r] for r in range(4)]; b = [WF[1][3][r] for r in range(4)]

    def unpack(dst2, src):
        k("v_lshlrev_b32", dst2[0], 16, src)
        k("v_and_b32", dst2[1], smask, src)

    for c in range(4):
        for r in range(4):
            k("v_add_f32", f[r], PS[0][c][r], PS[1][c][r])
            k("v_add_f32", g[r], PS[2][c][r], PS[3][c][r])
        for r in range(4):
            k("v_add_f32", f[r], f[r], g[r])
        for p in range(2):
            k("v_cvt_pk_bf16_f32", f[2 * p + 1], f[2 * p], f[2 * p + 1])
            unpack(f[2 * p:2 * p + 2], f[2 * p + 1])
        for r in range(4):
            k("v_mul_f32", g[r], snl, f[r])
        for r in range(4):
            k("v_exp_f32", g[r], g[r])
        for r in range(4):
            k("v_add_f32", g[r], 1.0, g[r])
        for r in range(4):
            k("v_rcp_f32", g[r], g[r])
        for r in range(4):
            k("v_mul_f32", g[r], g[r], f[r])
        for p in range(2):
            k("v_cvt_pk_bf16_f32", g[2 * p + 1], g[2 * p], g[2 * p + 1])
            unpack(g[2 * p:2 * p + 2], g[2 * p + 1])
        for p in range(2):
            unpack(a[2 * p:2 * p + 2], EN[2 * c + p])
            unpack(b[2 * p:2 * p + 2], ED[2 * c + p])
        for r in range(4):
            k("v_mul_f32", a[r], a[r], b[r])
        for p in range(2):
            k("v_cvt_pk_bf16_f32", a[2 * p + 1], a[2 * p], a[2 * p + 1])
            unpack(a[2 * p:2 * p + 2], a[2 * p + 1])
        for r in range(4):
            k("v_lshlrev_b32", b[r], 16, YV[4 * c + r])
        for r in range(4):
            k("v_add_f32", a[r], a[r], b[r])
        for p in range(2):
            k("v_cvt_pk_bf16_f32", a[2 * p + 1], a[2 * p], a[2 * p + 1])
            unpack(a[2 * p:2 * p + 2], a[2 * p + 1])
        for r in range(4):
            k("v_mul_f32", a[r], a[r], g[r])
        for p in range(2):
            k("v_cvt_pk_bf16_f32", a[2 * p + 1], a[2 * p], a[2 * p + 1])
            unpack(a[2 * p:2 * p + 2], a[2 * p + 1])
        for p in range(2):
            unpack(b[2 * p:2 * p + 2], EX[2 * c + p])
        for r in range(4):
            k("v_add_f32", a[r], a[r], b[r])
        for p in range(2):
            k("v_cvt_pk_bf16_f32", OUT[2 * c + p], a[2 * p], a[2 * p + 1])
    k("buffer_store_dwordx4", OUT[0:4], ve, so, 0, mod="offen")
    k("buffer_store_dwordx4", OUT[4:8], ve, so, 0, mod="offen offset:16")


def gen_k4():
    k = Asm()
    k.reset_regs(v0=1, s0=4)
    name = "k4_kernel"
    k("s_cmp_ge_u32", "s2", "256")
    k("s_cbranch_scc1", "K4_END")
    ptr = load_kernargs(k)
    lane = k.v(); wv = k.v(); swave = k.s()
    k("v_and_b32", lane, 63, "v0")
    k("v_lshrrev_b32", wv, 6, "v0")
    k("v_readfirstlane_b32", swave, wv)
    k.waitcnt(lgkm=0)
    swg = k.s()
    k("s_mov_b32", swg, "s2")
    gemm2_body(k, ptr, swg, lane, wv, swave)
    k.label("K4_END")
    k("s_endpgm")
    return name, k, dict(grid=256, block=256, lds=G2_LDS)
```

```python
import copy
import struct


class Reg:
    __slots__ = ("k", "i", "n")

    def __init__(self, k, i, n=1):
        self.k, self.i, self.n = k, i, n

    def __str__(self):
        if self.n == 1:
            return f"{self.k}{self.i}"
        return f"{self.k}[{self.i}:{self.i + self.n - 1}]"

    __repr__ = __str__

    def __getitem__(self, j):
        if isinstance(j, slice):
            a = j.start or 0
            b = self.n if j.stop is None else j.stop
            assert 0 <= a < b <= self.n, (a, b, self.n)
            return Reg(self.k, self.i + a, b - a)
        assert 0 <= j < self.n, (j, self.n)
        return Reg(self.k, self.i + j, 1)

    def keys(self):
        return [(self.k, self.i + j) for j in range(self.n)]


class Mod:
    def __init__(self, r, fmt):
        self.r, self.fmt = r, fmt

    def __str__(self):
        return self.fmt.format(self.r)


def neg(r):
    return Mod(r, "-{}")


def absm(r):
    return Mod(r, "|{}|")


def f2u(x):
    return struct.unpack("<I", struct.pack("<f", x))[0]


def fl(x):
    return "0x%08x" % f2u(x)


TRANS = ("v_exp_f32", "v_log_f32", "v_rcp_f32", "v_rsq_f32", "v_sqrt_f32", "v_sin_f32", "v_cos_f32",
         "v_rcp_iflag_f32", "v_exp_f16", "v_rcp_f16")

XDL_RW = {2: 5, 4: 8, 8: 12, 16: 20}
XDL_C_SAME = {2: 2, 4: 0, 8: 0, 16: 0}
XDL_C_OVL = {2: 4, 4: 6, 8: 10, 16: 18}
XDL_SG_C = {2: 3, 4: 6, 8: 10, 16: 18}
SG_RW = {2: 4, 4: 6, 8: 10, 16: 18}
SG_C_SAME = {2: 2, 4: 0, 8: 0, 16: 0}
SG_C_OVL = {2: 2, 4: 4, 8: 8, 16: 16}
XDL_C_WAR = {2: 1, 4: 3, 8: 7, 16: 15}


def mfma_info(mn):
    if mn.endswith("16x16x4_f32"):
        return ("sg", 8)
    if mn.endswith("32x32x2_f32"):
        return ("sg", 16)
    if "16x16x32" in mn:
        return ("xdl", 4)
    if "32x32x16" in mn:
        return ("xdl", 8)
    raise ValueError(mn)


class HState:
    def __init__(self):
        self.t = 0
        self.vw = {}
        self.mw = {}
        self.mc = {}
        self.sw = {}
        self.m0 = None
        self.st = {}
        self.ex = None


class Asm:
    def __init__(self):
        self.lines = []
        self.h = HState()
        self.vnext = 0
        self.snext = 0
        self.vmax = 0
        self.smax = 0
        self.nlabel = 0
        self.nops = 0

    def reset_regs(self, v0=1, s0=4):
        self.vnext, self.snext = v0, s0
        self.vmax, self.smax = v0, s0

    def v(self, n=1, align=None):
        al = align or (1 if n == 1 else (2 if n == 2 else 4 if n % 4 == 0 else 2))
        i = (self.vnext + al - 1) // al * al
        self.vnext = i + n
        self.vmax = max(self.vmax, self.vnext)
        assert self.vnext <= 256, "out of vgprs"
        return Reg("v", i, n)

    def s(self, n=1, align=None):
        al = align or (1 if n == 1 else (2 if n == 2 else 4))
        i = (self.snext + al - 1) // al * al
        self.snext = i + n
        self.smax = max(self.smax, self.snext)
        assert self.snext <= 100, "out of sgprs"
        return Reg("s", i, n)

    def mark(self):
        return (self.vnext, self.snext)

    def release(self, m):
        self.vnext, self.snext = m

    def raw(self, s):
        self.lines.append(s)

    def comment(self, s):
        self.lines.append("    ; " + s)

    def label(self, name):
        self.lines.append(name + ":")

    _uid = [0]

    def newlabel(self, base="L"):
        Asm._uid[0] += 1
        return f"{base}_{Asm._uid[0]}"

    def nop(self, states):
        while states > 0:
            n = min(states, 16)
            self.lines.append(f"    s_nop {n - 1}")
            self.h.t += n
            self.nops += n
            states -= n

    @staticmethod
    def _keys(op):
        if isinstance(op, Mod):
            op = op.r
        if isinstance(op, Reg):
            return op.keys()
        if isinstance(op, str) and op in ("vcc", "exec", "m0"):
            return [op]
        return []

    def __call__(self, mn, *ops, mod=""):
        h = self.h
        need = 0
        import re as _re
        mo = _re.search(r"offset:(\d+)", mod)
        if mo:
            lim = 65535 if mn.startswith("ds_") else 4095
            assert int(mo.group(1)) <= lim, (mn, mod)

        def req(tprod, n):
            nonlocal need
            need = max(need, tprod + n + 1)

        K = self._keys
        isv = lambda k: isinstance(k, tuple) and k[0] in ("v", "a")
        iss = lambda k: (isinstance(k, tuple) and k[0] == "s") or k == "vcc"
        vreads, vwrites, sreads_valu, swrites_valu = [], [], [], []
        kind = None
        is_dpp = ("quad_perm" in mod) or ("row_" in mod) or ("wave_" in mod)
        if mn.startswith("v_mfma"):
            kind = "mfma"
        elif mn.startswith("v_"):
            kind = "valu"
        elif mn.startswith("ds_"):
            kind = "ds"
        elif mn.startswith("buffer_") or mn.startswith("global_") or mn.startswith("flat_"):
            kind = "vmem"
        else:
            kind = "salu"

        def mfma_d_hazard_for_rw(key):
            e = h.mw.get(key)
            if e:
                t, cls, p, _ = e
                req(t, (XDL_RW if cls == "xdl" else SG_RW)[p])

        if kind == "valu":
            if mn.startswith("v_cmp"):
                dst = K(ops[0]); srcs = [k for o in ops[1:] for k in K(o)]
                swrites_valu = dst
                assert not mn.startswith("v_cmpx")
            elif mn in ("v_readfirstlane_b32", "v_readlane_b32"):
                swrites_valu = K(ops[0])
                srcs = K(ops[1])
                for k in srcs:
                    if k in h.vw:
                        req(h.vw[k][0], 1)
                if mn == "v_readlane_b32":
                    for k in K(ops[2]):
                        if k in h.sw:
                            req(h.sw[k], 4)
            elif mn.startswith("v_permlane"):
                vwrites = K(ops[0]) + K(ops[1])
                srcs = list(vwrites)
                for k in srcs:
                    if k in h.vw:
                        req(h.vw[k][0], 2)
            elif "_co_" in mn:
                vwrites = K(ops[0]); swrites_valu = K(ops[1])
                srcs = [k for o in ops[2:] for k in K(o)]
            else:
                vwrites = K(ops[0])
                srcs = [k for o in ops[1:] for k in K(o)]
                if mn.startswith("v_fmac") or mn.startswith("v_dot2c") or mn.startswith("v_pk_fmac") or is_dpp:
                    srcs = srcs + vwrites
            if is_dpp:
                for k in K(ops[1]):
                    if k in h.vw:
                        req(h.vw[k][0], 2)
                if h.ex is not None:
                    req(h.ex, 5)
            istrans = mn in TRANS
            for k in srcs:
                if isv(k):
                    mfma_d_hazard_for_rw(k)
                    e = h.vw.get(k)
                    if e and e[1] and not istrans:
                        req(e[0], 1)
                elif iss(k):
                    if k in h.sw:
                        req(h.sw[k], 2)
            for k in vwrites:
                mfma_d_hazard_for_rw(k)
                if k in h.mc:
                    req(h.mc[k][0], XDL_C_WAR[h.mc[k][1]])
                if k in h.st:
                    req(h.st[k], 2)
        elif kind == "mfma":
            cls, p = mfma_info(mn)
            d = ops[0]
            for o in ops[1:3]:
                for k in K(o):
                    if k in h.vw:
                        req(h.vw[k][0], 2)
                    mfma_d_hazard_for_rw(k)
            c = ops[3]
            if isinstance(c, Reg):
                for k in c.keys():
                    if k in h.vw:
                        req(h.vw[k][0], 2)
                    e = h.mw.get(k)
                    if e:
                        t, pcls, pp, rg = e
                        same = rg == (c.k, c.i, c.n) and pcls == cls and pp == p
                        if pcls == "xdl":
                            if cls == "xdl":
                                req(t, (XDL_C_SAME if same else XDL_C_OVL)[pp])
                            else:
                                req(t, XDL_SG_C[pp])
                        else:
                            if cls == "sg":
                                req(t, (SG_C_SAME if same else SG_C_OVL)[pp])
            for k in d.keys():
                e = h.mw.get(k)
                if e and not (isinstance(c, Reg) and (c.k, c.i, c.n) == (d.k, d.i, d.n)):
                    t, pcls, pp, rg = e
                    req(t, (XDL_C_OVL if pcls == "xdl" else SG_C_OVL)[pp])
                if k in h.st:
                    req(h.st[k], 2)
            if h.ex is not None:
                req(h.ex, 4)
        elif kind in ("ds", "vmem"):
            reads, writes = [], []
            sregs = []
            lds_dma = kind == "vmem" and (" lds" in (" " + mod) or "load_lds" in mn)
            if kind == "ds":
                if mn.startswith("ds_read") or "permute" in mn or "swizzle" in mn:
                    writes = K(ops[0]); reads = [k for o in ops[1:] for k in K(o)]
                else:
                    reads = [k for o in ops for k in K(o)]
            else:
                if mn.startswith("buffer_load") and not lds_dma:
                    writes = K(ops[0]); rest = ops[1:]
                elif mn.startswith("global_load") and not lds_dma:
                    writes = K(ops[0]); rest = ops[1:]
                else:
                    rest = ops
                allk = [k for o in rest for k in K(o)]
                reads = [k for k in allk if isv(k)]
                sregs = [k for k in allk if iss(k)]
                if lds_dma and h.m0 is not None:
                    req(h.m0, 1)
            for k in reads:
                if isv(k):
                    mfma_d_hazard_for_rw(k)
            for k in writes:
                mfma_d_hazard_for_rw(k)
                if k in h.st:
                    req(h.st[k], 1)
            for k in sregs:
                if k in h.sw:
                    req(h.sw[k], 5)
        if need > h.t:
            self.nop(need - h.t)
        t = h.t
        if kind == "valu":
            istrans = mn in TRANS
            for k in vwrites:
                h.vw[k] = (t, istrans)
                h.mw.pop(k, None)
            for k in swrites_valu:
                if k == "exec":
                    h.ex = t
                else:
                    h.sw[k] = t
        elif kind == "mfma":
            cls, p = mfma_info(mn)
            d = ops[0]
            for k in d.keys():
                h.mw[k] = (t, cls, p, (d.k, d.i, d.n))
                h.vw.pop(k, None)
            if cls == "xdl" and isinstance(ops[3], Reg):
                for k in ops[3].keys():
                    h.mc[k] = (t, p)
        elif kind in ("ds", "vmem"):
            if kind == "vmem" and ("store_dwordx4" in mn or "store_dwordx3" in mn):
                data = ops[0] if mn.startswith("buffer") else ops[1]
                for k in K(data):
                    h.st[k] = t
            if (kind == "ds" and mn.startswith("ds_read")) or (kind == "vmem" and "load" in mn and not lds_dma):
                for k in K(ops[0]):
                    h.vw.pop(k, None)
                    h.mw.pop(k, None)
        else:
            if ops and isinstance(ops[0], str) and ops[0] == "m0":
                h.m0 = t
            elif ops:
                for k in K(ops[0]):
                    h.sw.pop(k, None)
        h.t = t + 1
        txt = "    " + mn
        if ops:
            txt += " " + ", ".join(str(o) for o in ops)
        if mod:
            txt += " " + mod
        self.lines.append(txt)

    def clear(self):
        h = self.h
        need = 0
        for k, (t, tr) in h.vw.items():
            need = max(need, t + 2 + 1)
        for k, (t, cls, p, _) in h.mw.items():
            need = max(need, t + (XDL_RW if cls == "xdl" else SG_RW)[p] + 1)
        for k, (t, p) in h.mc.items():
            need = max(need, t + XDL_C_WAR[p] + 1)
        for k, t in h.sw.items():
            need = max(need, t + 5 + 1)
        for k, t in h.st.items():
            need = max(need, t + 2 + 1)
        if h.m0 is not None:
            need = max(need, h.m0 + 2)
        if h.ex is not None:
            need = max(need, h.ex + 6)
        if need > h.t:
            self.nop(need - h.t)

    def loop(self, body):
        st0 = copy.deepcopy(self.h)
        saved = self.lines
        m = (self.vnext, self.snext, self.nlabel, self.nops)
        self.lines = []
        body()
        st1 = self.h
        shift = st1.t - st0.t
        mg = copy.deepcopy(st0)
        for name in ("vw", "mw", "mc", "sw", "st"):
            d0 = getattr(mg, name)
            for k, e in getattr(st1, name).items():
                if isinstance(e, tuple):
                    e2 = (e[0] - shift,) + tuple(e[1:])
                    if k not in d0 or d0[k][0] < e2[0]:
                        d0[k] = e2
                else:
                    e2 = e - shift
                    if k not in d0 or d0[k] < e2:
                        d0[k] = e2
        for name in ("m0", "ex"):
            e = getattr(st1, name)
            if e is not None:
                e2 = e - shift
                o = getattr(mg, name)
                if o is None or o < e2:
                    setattr(mg, name, e2)
        self.h = mg
        self.lines = saved
        self.vnext, self.snext, self.nlabel, self.nops = m
        body()

    def stamp_init(self, n=12):
        self.stamps = [self.s(2) for _ in range(n)]
        self.nstamp = 0

    def stamp(self, wait=True):
        if not getattr(self, "stamps", None):
            return
        self("s_memtime", self.stamps[self.nstamp])
        self.nstamp += 1

    def stamp_dump(self, dbgptr, wg):
        if not getattr(self, "stamps", None):
            return
        lab = self.newlabel("NOST")
        self.waitcnt(lgkm=0)
        self("s_cmp_lg_u32", "s2", str(wg))
        self("s_cbranch_scc1", lab)
        sd = self.s(4)
        self.srd(sd, dbgptr, 256)
        vt = self.v(); vo = self.v()
        self("v_lshlrev_b32", vo, 6, "v0")
        self("v_lshlrev_b32", vo, 4, vo)
        for j in range(self.nstamp):
            self("v_mov_b32", vt, self.stamps[j][0])
            self("buffer_store_dword", vt, vo, sd, 0, mod=f"offen offset:{4 * j}")
        self.label(lab)

    def waitcnt(self, vm=None, lgkm=None):
        parts = []
        if vm is not None:
            parts.append(f"vmcnt({vm})")
        if lgkm is not None:
            parts.append(f"lgkmcnt({lgkm})")
        self.lines.append("    s_waitcnt " + " ".join(parts))
        self.h.t += 1

    def srd(self, dst, base, nbytes):
        self("s_mov_b32", dst[0], base[0])
        self("s_and_b32", dst[1], base[1], "0xffff")
        self("s_mov_b32", dst[2], str(nbytes))
        self("s_mov_b32", dst[3], "0x00020000")

    def text(self):
        return "\n".join(self.lines) + "\n"


def kernel_header(name):
    return (f".globl {name}\n.p2align 8\n.type {name},@function\n{name}:\n")


def kernel_desc(name, vgpr, sgpr, accum=None):
    vg = max(vgpr, 8)
    acc = accum if accum is not None else (vg + 3) // 4 * 4
    return (f".p2align 6\n.amdhsa_kernel {name}\n"
            f"  .amdhsa_next_free_vgpr {vg}\n"
            f"  .amdhsa_next_free_sgpr {max(sgpr, 16)}\n"
            f"  .amdhsa_accum_offset {acc}\n"
            f"  .amdhsa_group_segment_fixed_size 0\n"
            f"  .amdhsa_kernarg_size 112\n"
            f"  .amdhsa_user_sgpr_count 2\n"
            f"  .amdhsa_user_sgpr_kernarg_segment_ptr 1\n"
            f"  .amdhsa_system_sgpr_workgroup_id_x 1\n"
            f"  .amdhsa_float_denorm_mode_32 3\n"
            f".end_amdhsa_kernel\n")
```

```python
import math
import struct
import numpy as np
from asmgen import *

L, D, N, F = 2048, 512, 128, 1792
WS_XN = 0
WS_XNT = 2 << 20
XT_PITCH = 4160
WS_KH = 5 << 20
WS_KL = 7 << 20
WS_KINV = 9 << 20
WS_H = 10 << 20
WS_YT = 18 << 20
WS_END = 21 << 20

LN_WGS = 64
KG_WGS = 256
K1_WGS = LN_WGS + KG_WGS
LN_PITCH = 1056
K1_LDS = 32 * LN_PITCH


def f32(x):
    return float(np.float32(x))


def split(x):
    hi = f32(x)
    lo = f32(x - hi)
    return hi, lo


L2E_HI, L2E_LO = split(math.log2(math.e))
I2P_HI, I2P_LO = split(1.0 / (2 * math.pi))
LN2 = math.log(2.0)


def load_kernargs(k):
    P = k.s(16, align=4)
    Q = k.s(8, align=4)
    R = k.s(4, align=4)
    k("s_load_dwordx16", P, "s[0:1]", "0")
    k("s_load_dwordx8", Q, "s[0:1]", "64")
    k("s_load_dwordx4", R, "s[0:1]", "96")
    ptr = {}
    names = ["u", "lar", "ai", "cr", "ci", "ldt", "dsk", "bx"]
    for j, nm in enumerate(names):
        ptr[nm] = P[2 * j:2 * j + 2]
    for j, nm in enumerate(["wg", "wu", "wd", "out"]):
        ptr[nm] = Q[2 * j:2 * j + 2]
    ptr["dbg"] = R[0:2]
    ptr["ws"] = R[2:4]
    return ptr


def ws_srd(k, ptr, off, nbytes):
    d = k.s(4)
    k("s_add_u32", d[0], ptr["ws"][0], str(off))
    k("s_addc_u32", d[1], ptr["ws"][1], "0")
    k("s_and_b32", d[1], d[1], "0xffff")
    k("s_mov_b32", d[2], str(nbytes))
    k("s_mov_b32", d[3], "0x00020000")
    return d


def reduce64_sum(k, regs, tmps, op="v_add_f32"):
    for pat in ("quad_perm:[1,0,3,2]", "quad_perm:[2,3,0,1]", "row_half_mirror", "row_mirror"):
        for r in regs:
            k(op + "_dpp", r, r, r, mod=pat + " row_mask:0xf bank_mask:0xf")
    for sw in ("v_permlane16_swap_b32", "v_permlane32_swap_b32"):
        for r, t in zip(regs, tmps):
            k("v_mov_b32", t, r)
        for r, t in zip(regs, tmps):
            k(sw, r, t)
        for r, t in zip(regs, tmps):
            k(op, r, r, t)


def bf16r(k, dst, src):
    k("v_cvt_pk_bf16_f32", dst, src, src)
    k("v_lshlrev_b32", dst, 16, dst)


def exp_precise(k, dst, x, t0, t1, sc):
    k("v_mul_f32", t0, sc["l2e_hi"], x)
    k("v_fma_f32", t1, x, sc["l2e_hi"], neg(t0))
    k("v_fma_f32", t1, x, sc["l2e_lo"], t1)
    k("v_exp_f32", dst, t0)
    k("v_mul_f32", t1, sc["ln2"], t1)
    k("v_fma_f32", dst, dst, t1, dst)


def gen_k1(hilo=True, stamps=False):
    k = Asm()
    k.reset_regs(v0=1, s0=4)
    name = "k1_kernel"
    if stamps:
        k.stamp_init(5)
    k.stamp()
    k("s_cmp_ge_u32", "s2", str(K1_WGS))
    k("s_cbranch_scc1", "K1_END")
    ptr = load_kernargs(k)
    lane = k.v()
    wv = k.v()
    swave = k.s()
    k("v_and_b32", lane, 63, "v0")
    k("v_lshrrev_b32", wv, 6, "v0")
    k("v_readfirstlane_b32", swave, wv)
    k.waitcnt(lgkm=0)
    k("s_cmp_ge_u32", "s2", str(LN_WGS))
    k.clear()
    k("s_cbranch_scc1", "K1_KGEN")
    base_mark = k.mark()
    sx = k.s(4)
    k.srd(sx, ptr["u"], L * D * 2)
    sxn = ws_srd(k, ptr, WS_XN, L * D * 2)
    sxt = ws_srd(k, ptr, WS_XNT, D * XT_PITCH)
    srow = k.s()
    k("s_lshl_b32", srow, "s2", 15)
    st = k.s()
    k("s_lshl_b32", st, swave, 13)
    k("s_add_u32", srow, srow, st)
    srow4 = k.s()
    k("s_add_u32", srow4, srow, 4096)
    voff = k.v()
    k("v_lshlrev_b32", voff, 4, lane)
    X = [k.v(4) for _ in range(8)]
    for r in range(8):
        k("buffer_load_dwordx4", X[r], voff, sx, srow if r < 4 else srow4, mod=f"offen offset:{(r & 3) * 1024}")
    sones = k.s()
    k("s_mov_b32", sones, "0x3f803f80")
    smask = k.s()
    k("s_mov_b32", smask, "0xffff0000")
    S = [k.v() for _ in range(8)]
    T = [k.v() for _ in range(8)]
    for r in range(8):
        k.waitcnt(vm=7 - r)
        k("v_dot2_f32_bf16", S[r], X[r][0], sones, 0)
        for j in range(1, 4):
            k("v_dot2_f32_bf16", S[r], X[r][j], sones, S[r])
    reduce64_sum(k, S, T)
    mean = S
    for r in range(8):
        k("v_mul_f32", mean[r], fl(1.0 / 512), S[r])
    Fv = [k.v(8) for _ in range(8)]
    SS = [k.v() for _ in range(8)]
    for r in range(8):
        for j in range(4):
            k("v_lshlrev_b32", Fv[r][2 * j], 16, X[r][j])
            k("v_and_b32", Fv[r][2 * j + 1], smask, X[r][j])
    for j in range(8):
        for r in range(8):
            k("v_sub_f32", T[r], Fv[r][j], mean[r])
            if j == 0:
                k("v_mul_f32", SS[r], T[r], T[r])
            else:
                k("v_fma_f32", SS[r], T[r], T[r], SS[r])
    reduce64_sum(k, SS, T)
    den = SS
    rc = [k.v() for _ in range(8)]
    for r in range(8):
        k("v_mul_f32", den[r], fl(1.0 / 512), SS[r])
    for r in range(8):
        bf16r(k, den[r], den[r])
    for r in range(8):
        k("v_add_f32", den[r], fl(1e-5), den[r])
    for r in range(8):
        bf16r(k, den[r], den[r])
    for r in range(8):
        k("v_sqrt_f32", den[r], den[r])
    for r in range(8):
        bf16r(k, den[r], den[r])
    for r in range(8):
        k("v_rcp_f32", rc[r], den[r])
    for r in range(8):
        bf16r(k, mean[r], mean[r])
    vlds = k.v()
    k("v_mul_u32_u24", vlds, LN_PITCH * 8, wv)
    k("v_add_u32", vlds, vlds, voff)
    H = k.v(4)
    a0, a1, q0, q1, e0, e1 = [k.v() for _ in range(6)]
    for r in range(8):
        O = X[r]
        for j in range(4):
            k("v_sub_f32", a0, Fv[r][2 * j], mean[r])
            k("v_sub_f32", a1, Fv[r][2 * j + 1], mean[r])
            k("v_cvt_pk_bf16_f32", a1, a0, a1)
            k("v_lshlrev_b32", a0, 16, a1)
            k("v_and_b32", a1, smask, a1)
            k("v_mul_f32", q0, a0, rc[r])
            k("v_mul_f32", q1, a1, rc[r])
            k("v_fma_f32", e0, neg(q0), den[r], a0)
            k("v_fma_f32", e1, neg(q1), den[r], a1)
            k("v_fma_f32", q0, e0, rc[r], q0)
            k("v_fma_f32", q1, e1, rc[r], q1)
            k("v_cvt_pk_bf16_f32", O[j], q0, q1)
            k("v_lshlrev_b32", q0, 16, O[j])
            k("v_and_b32", q1, smask, O[j])
            k("v_cvt_pkrtz_f16_f32", H[j], q0, q1)
        k("buffer_store_dwordx4", O, voff, sxn, srow if r < 4 else srow4, mod=f"offen offset:{(r & 3) * 1024}")
        k("ds_write_b128", vlds, H, mod=f"offset:{r * LN_PITCH}")
    k.waitcnt(lgkm=0)
    k("s_barrier")
    g = k.v(); i16 = k.v(); rr = k.v(); cc = k.v(); vrd = k.v(); vst = k.v()
    k("v_lshrrev_b32", g, 4, lane)
    k("v_and_b32", i16, 15, lane)
    k("v_lshrrev_b32", rr, 2, i16)
    k("v_and_b32", cc, 3, i16)
    k("v_lshl_add_u32", rr, g, 3, rr)
    k("v_mul_u32_u24", vrd, LN_PITCH, rr)
    k("v_lshl_add_u32", vrd, cc, 3, vrd)
    k("v_lshl_add_u32", vrd, wv, 8, vrd)
    k("v_lshl_add_u32", vst, wv, 7, i16)
    k("v_mul_u32_u24", vst, XT_PITCH, vst)
    k("v_lshl_add_u32", vst, g, 4, vst)
    sl0 = k.s()
    k("s_lshl_b32", sl0, "s2", 6)
    k("s_add_u32", sl0, sl0, 64)
    zz = k.v(4)
    for j in range(4):
        k("v_mov_b32", zz[j], 0)
    vzp = k.v(); vzt = k.v()
    k("v_lshrrev_b32", vzp, 2, "v0")
    k("v_mul_u32_u24", vzp, XT_PITCH, vzp)
    k("v_and_b32", vzt, 3, "v0")
    k("v_lshl_add_u32", vzp, vzt, 4, vzp)
    szp = k.s()
    k("s_mul_i32", szp, "s2", 8 * XT_PITCH)
    sex = k.s(2)
    k("v_cmp_gt_u32", "vcc", 32, "v0")
    k("s_and_saveexec_b64", sex, "vcc")
    k("s_cbranch_execz", "K1_NOZ")
    k("buffer_store_dwordx4", zz, vzp, sxt, szp, mod="offen")
    k.label("K1_NOZ")
    k("s_mov_b64", "exec", sex)
    TT = [k.v(4) for _ in range(8)]
    for b in range(8):
        k("ds_read_b64_tr_b16", TT[b][0:2], vrd, mod=f"offset:{b * 32}")
        k("ds_read_b64_tr_b16", TT[b][2:4], vrd, mod=f"offset:{b * 32 + 4 * LN_PITCH}")
    for b in range(8):
        k.waitcnt(lgkm=14 - 2 * b)
        k("buffer_store_dwordx4", TT[b], vst, sxt, sl0, mod="offen")
        if b < 7:
            k("v_add_u32", vst, 16 * XT_PITCH, vst)
    k("s_endpgm")

    k.release(base_mark)
    k.label("K1_KGEN")
    sc = {}
    for nm, val in (("l2e_hi", L2E_HI), ("l2e_lo", L2E_LO), ("ln2", LN2), ("i2p_hi", I2P_HI), ("i2p_lo", I2P_LO)):
        sc[nm] = k.s()
        k("s_mov_b32", sc[nm], fl(val))
    smask = k.s()
    k("s_mov_b32", smask, "0xffff0000")
    sd = k.s()
    shw = k.s()
    k("s_sub_u32", sd, "s2", LN_WGS)
    k("s_lshl_b32", sd, sd, 1)
    st = k.s()
    k("s_lshr_b32", st, swave, 1)
    k("s_add_u32", sd, sd, st)
    k("s_and_b32", shw, swave, 1)
    srds = {}
    for nm in ("lar", "ai", "cr", "ci"):
        srds[nm] = k.s(4)
        k.srd(srds[nm], ptr[nm], D * N * 2)
    sldt = k.s(4)
    k.srd(sldt, ptr["ldt"], D * 2)
    skh = ws_srd(k, ptr, WS_KH, D * L * 2)
    skl = ws_srd(k, ptr, WS_KL, D * L * 2)
    ski = ws_srd(k, ptr, WS_KINV, D * 4)
    i16 = k.v(); q = k.v()
    k("v_and_b32", i16, 15, lane)
    k("v_lshrrev_b32", q, 4, lane)
    soff = k.s()
    k("s_lshl_b32", soff, sd, 8)
    k("s_lshl_b32", st, shw, 7)
    k("s_add_u32", soff, soff, st)
    voff = k.v()
    k("v_lshlrev_b32", voff, 5, q)
    PAR = {}
    for nm in ("lar", "ai", "cr", "ci"):
        PAR[nm] = k.v(8)
        k("buffer_load_dwordx4", PAR[nm][0:4], voff, srds[nm], soff, mod="offen")
        k("buffer_load_dwordx4", PAR[nm][4:8], voff, srds[nm], soff, mod="offen offset:16")
    vz = k.v()
    k("v_mov_b32", vz, 0)
    ldt = k.v()
    k("s_lshl_b32", st, sd, 1)
    k("buffer_load_ushort", ldt, vz, sldt, st, mod="offen")
    pF = k.v()
    k("v_lshlrev_b32", pF, 3, i16)
    k("v_cvt_f32_u32", pF, pF)
    pR = [k.v() for _ in range(3)]
    t0, t1, t2 = k.v(), k.v(), k.v()
    k("v_lshlrev_b32", t0, 1, i16)
    k("v_add_u32", t0, 240, t0)
    k("v_and_b32", t1, 1, i16)
    k("v_lshlrev_b32", t1, 2, t1)
    k("v_bfe_u32", t2, i16, 1, 1)
    k("v_lshl_add_u32", t1, t2, 8, t1)
    k("v_add_u32", t1, 512, t1)
    k("v_cmp_gt_u32", "vcc", 8, i16)
    k("v_cndmask_b32", pR[0], t0, i16, "vcc")
    k("v_cmp_gt_u32", "vcc", 12, i16)
    k("v_cndmask_b32", pR[0], t1, pR[0], "vcc")
    k("v_add_u32", pR[1], 128, pR[0])
    k("v_lshlrev_b32", pR[2], 7, i16)
    k("v_add_u32", pR[2], 1024, pR[2])
    for r in range(3):
        k("v_cvt_f32_u32", pR[r], pR[r])
    dt = k.v(); ndl = k.v(); dt2 = k.v()
    k.waitcnt(vm=0)
    k.stamp()
    k("v_lshlrev_b32", ldt, 16, ldt)
    exp_precise(k, dt, ldt, t0, t1, sc)
    bf16r(k, dt, dt)
    k("v_mul_f32", ndl, sc["l2e_hi"], dt)
    k("v_sub_f32", ndl, 0, ndl)
    k("v_add_f32", dt2, dt, dt)
    Dacc = [k.v(4) for _ in range(3)]
    lar, ai, cr, ci = k.v(), k.v(), k.v(), k.v()
    ar2, whi, wlo = k.v(), k.v(), k.v()
    B1, B2 = k.v(), k.v()
    mag, rv, tt, sn, cs = [k.v() for _ in range(5)]
    Er = [k.v() for _ in range(3)]
    Ei = [k.v() for _ in range(3)]

    def cexp(p, outr, outi):
        k("v_mul_f32", mag, ar2, p)
        k("v_mul_f32", rv, whi, p)
        k("v_exp_f32", mag, mag)
        k("v_fma_f32", tt, whi, p, neg(rv))
        k("v_fma_f32", tt, wlo, p, tt)
        k("v_fract_f32", rv, rv)
        k("v_add_f32", rv, rv, tt)
        k("v_sin_f32", sn, rv)
        k("v_cos_f32", cs, rv)
        k("v_mul_f32", outi, mag, sn)
        k("v_mul_f32", outr, mag, cs)

    for s in range(16):
        for nm, dst in (("lar", lar), ("ai", ai), ("cr", cr), ("ci", ci)):
            src = PAR[nm][s >> 1]
            if s & 1:
                k("v_and_b32", dst, smask, src)
            else:
                k("v_lshlrev_b32", dst, 16, src)
        exp_precise(k, ar2, lar, t0, t1, sc)
        bf16r(k, ar2, ar2)
        k("v_mul_f32", ar2, ar2, ndl)
        k("v_mul_f32", ai, ai, dt)
        k("v_mul_f32", whi, sc["i2p_hi"], ai)
        k("v_fma_f32", wlo, ai, sc["i2p_hi"], neg(whi))
        k("v_fma_f32", wlo, ai, sc["i2p_lo"], wlo)
        k("v_mul_f32", cr, cr, dt2)
        k("v_mul_f32", ci, ci, dt2)
        cexp(pF, t0, t1)
        k("v_mul_f32", B1, ci, t1)
        k("v_fma_f32", B1, cr, t0, neg(B1))
        k("v_mul_f32", B2, cr, t1)
        k("v_fma_f32", B2, neg(ci), t0, neg(B2))
        for r in range(3):
            cexp(pR[r], Er[r], Ei[r])
        for r in range(3):
            k("v_mfma_f32_16x16x4_f32", Dacc[r], Er[r], B1, Dacc[r] if s else 0)
        for r in range(3):
            k("v_mfma_f32_16x16x4_f32", Dacc[r], Ei[r], B2, Dacc[r])
    k.stamp()
    sreg = k.s()
    k("s_lshr_b32", sreg, swave, 1)
    k("s_lshl_b32", sreg, sreg, 13)
    vb = k.v()
    k("v_mul_u32_u24", vb, 48, lane)
    k("v_add_u32", vb, sreg, vb)
    k("s_cmp_eq_u32", shw, 0)
    k.clear()
    k("s_cbranch_scc1", "K1_KG_A")
    for r in range(3):
        k("ds_write_b128", vb, Dacc[r], mod=f"offset:{16 * r}")
    k.waitcnt(lgkm=0)
    k("s_barrier")
    k("s_branch", "K1_KG_B")
    k.label("K1_KG_A")
    k("s_barrier")
    P2 = [k.v(4) for _ in range(3)]
    for r in range(3):
        k("ds_read_b128", P2[r], vb, mod=f"offset:{16 * r}")
    k.waitcnt(lgkm=0)
    for r in range(3):
        for j in range(4):
            k("v_add_f32", Dacc[r][j], Dacc[r][j], P2[r][j])
    mx = k.v(); mt = k.v()
    k("v_max3_f32", mx, absm(Dacc[0][0]), absm(Dacc[0][1]), absm(Dacc[0][2]))
    vals = [Dacc[r][j] for r in range(3) for j in range(4)][3:]
    for a in range(0, 8, 2):
        k("v_max3_f32", mx, absm(vals[a]), absm(vals[a + 1]), mx)
    k("v_max_f32", mx, absm(vals[8]), mx)
    reduce64_sum(k, [mx], [mt], op="v_max_f32")
    scl = k.v(); inv = k.v()
    k("v_bfe_u32", t0, mx, 23, 8)
    k("v_sub_u32", t1, 268, t0)
    k("v_mov_b32", t2, 240)
    k("v_med3_i32", t1, t1, 14, t2)
    k("v_lshlrev_b32", scl, 23, t1)
    k("v_sub_u32", t1, 254, t1)
    k("v_lshlrev_b32", inv, 23, t1)
    k("s_lshl_b32", st, sd, 2)
    k("buffer_store_dword", inv, vz, ski, st, mod="offen")
    ub = k.v(); us = k.v(); uadd = k.v()
    k("v_lshlrev_b32", t0, 2, q)
    k("v_lshl_add_u32", t0, i16, 3, t0)
    k("v_lshlrev_b32", t1, 2, i16)
    k("v_add_u32", t1, 256, t1)
    k("v_mov_b32", t2, 384)
    k("v_lshl_add_u32", t2, i16, 1, t2)
    k("v_cmp_gt_u32", "vcc", 2, q)
    k("v_cndmask_b32", ub, t1, t0, "vcc")
    k("v_mov_b32", uadd, 64)
    k("v_mov_b32", t0, 128)
    k("v_cndmask_b32", uadd, uadd, t0, "vcc")
    k("v_cmp_gt_u32", "vcc", 3, q)
    k("v_cndmask_b32", ub, t2, ub, "vcc")
    k("v_mov_b32", t0, 32)
    k("v_cndmask_b32", uadd, t0, uadd, "vcc")
    jx = k.v()
    k("v_mov_b32", t0, 62)
    k("v_mov_b32", t1, 0)
    k("v_cndmask_b32", jx, t0, t1, "vcc")
    k("v_lshlrev_b32", ub, 1, ub)
    k("v_add_u32", ub, sreg, ub)
    k("v_lshlrev_b32", uadd, 1, uadd)
    k("v_lshlrev_b32", jx, 1, jx)
    a_t0lo = ub
    a_t0hi = k.v(); a_t1lo = k.v(); a_t1hi = k.v(); a_t2 = k.v()
    k("v_add_u32", a_t0hi, ub, jx)
    k("v_add_u32", a_t1lo, ub, uadd)
    k("v_add_u32", a_t1hi, a_t1lo, jx)
    k("v_lshl_add_u32", a_t2, q, 6, i16)
    k("v_lshlrev_b32", a_t2, 1, a_t2)
    k("v_add_u32", a_t2, sreg, a_t2)
    hv = k.v(); lv = k.v()
    for r in range(3):
        for j in range(4):
            k("v_mul_f32", t0, Dacc[r][j], scl)
            k("v_cvt_f16_f32", hv, t0)
            if r < 2:
                addr = ((a_t0lo, a_t0hi), (a_t1lo, a_t1hi))[r][j >> 1]
                off = 2 * j
            else:
                addr = a_t2
                off = 1024 + 32 * j
            k("ds_write_b16", addr, hv, mod=f"offset:{3072 + off}")
            if hilo:
                k("v_cvt_f32_f16", t1, hv)
                k("v_sub_f32", t1, t0, t1)
                k("v_cvt_f16_f32", lv, t1)
                k("ds_write_b16", addr, lv, mod=f"offset:{4608 + off}")
    k.waitcnt(lgkm=0)
    k.clear()
    k.label("K1_KG_B")
    k("s_barrier")
    vl = k.v()
    k("v_lshlrev_b32", vl, 4, lane)
    k("s_lshl_b32", st, shw, 10)
    k("v_add_u32", vl, st, vl)
    OH = k.v(8); OL = k.v(8)
    RH = k.v(16); RL = k.v(16)
    ua = [k.v() for _ in range(4)]
    for e in range(16):
        grp, j = e >> 3, e & 7
        pos = grp * 8 + (7 - j)
        a = ua[e & 3]
        k("v_add_u32", t0, e, vl)
        k("v_cvt_f32_u32", t1, t0)
        k("v_cvt_pk_bf16_f32", t1, t1, t1)
        k("v_and_b32", t1, "0xffff", t1)
        k("v_subrev_u32", t1, 17024, t1)
        k("v_cmp_gt_u32", "vcc", 128, t0)
        k("v_cndmask_b32", t1, t1, t0, "vcc")
        k("v_lshlrev_b32", a, 1, t1)
        k("v_add_u32", a, sreg, a)
        k("ds_read_u16", RH[pos], a, mod="offset:3072")
        if hilo:
            k("ds_read_u16", RL[pos], a, mod="offset:4608")
    k.waitcnt(lgkm=0)
    for j in range(8):
        k("v_lshl_or_b32", OH[j], RH[2 * j + 1], 16, RH[2 * j])
        if hilo:
            k("v_lshl_or_b32", OL[j], RL[2 * j + 1], 16, RL[2 * j])
    vst = k.v()
    k("v_lshlrev_b32", vst, 1, vl)
    k("s_lshl_b32", st, sd, 12)
    k.waitcnt(lgkm=0)
    k("buffer_store_dwordx4", OH[0:4], vst, skh, st, mod="offen")
    k("buffer_store_dwordx4", OH[4:8], vst, skh, st, mod="offen offset:16")
    if hilo:
        k("buffer_store_dwordx4", OL[0:4], vst, skl, st, mod="offen")
        k("buffer_store_dwordx4", OL[4:8], vst, skl, st, mod="offen offset:16")
    k.stamp()
    k.waitcnt(vm=0)
    k.stamp()
    k.stamp_dump(ptr["dbg"], 100)
    k.label("K1_END")
    k("s_endpgm")
    return name, k, dict(grid=K1_WGS, block=256, lds=K1_LDS)
```

```python
import math
from asmgen import *
from k1 import *

G1_STAGE = 49152
G1_NB = 3
G1_LDS = G1_STAGE * G1_NB
GK1 = -2.0 * math.log2(math.e) * math.sqrt(2.0 / math.pi)
GK2 = GK1 * 0.044715


def gemm1_body(k, ptr, swg, lane, wv, swave):
    sxn = ws_srd(k, ptr, WS_XN, L * D * 2)
    sh = ws_srd(k, ptr, WS_H, L * F * 2)
    smat = k.s(); sw1 = k.s(); st = k.s()
    k("s_lshr_b32", smat, swave, 1)
    k("s_and_b32", sw1, swave, 1)
    sW = k.s(4)
    k("s_cmp_eq_u32", smat, 0)
    k("s_cselect_b32", sW[0], ptr["wg"][0], ptr["wu"][0])
    k("s_cselect_b32", sW[1], ptr["wg"][1], ptr["wu"][1])
    k("s_and_b32", sW[1], sW[1], "0xffff")
    k("s_mov_b32", sW[2], str(D * F * 2))
    k("s_mov_b32", sW[3], "0x00020000")
    smt = k.s(); snt = k.s()
    k("s_lshr_b32", smt, swg, 4)
    k("s_and_b32", snt, swg, 15)
    sn0b = k.s()
    k("s_mul_i32", sn0b, snt, 224)
    i16 = k.v(); kg = k.v()
    k("v_and_b32", i16, 15, lane)
    k("v_lshrrev_b32", kg, 4, lane)
    vd = [k.v(), k.v()]
    t0, t1, t2 = k.v(), k.v(), k.v()
    k("v_lshrrev_b32", t0, 1, i16)
    k("v_xor_b32", t0, t0, kg)
    k("v_and_b32", t2, 1, i16)
    k("v_lshlrev_b32", t2, 4, t2)
    k("v_mul_u32_u24", t1, 3584, kg)
    k("v_add_u32", t2, t2, t1)
    for b in range(2):
        if b:
            k("v_xor_b32", t0, 4, t0)
        k("v_cmp_eq_u32", "vcc", 7, t0)
        k("v_cndmask_b32", t1, t0, 0, "vcc") if False else None
        k("v_mov_b32", t1, 0)
        k("v_cndmask_b32", t1, t0, t1, "vcc")
        k("v_lshl_add_u32", vd[b], t1, 5, t2)
    sgo = k.s()
    k("s_mul_i32", sgo, sw1, 32 * 3584)
    k("s_add_u32", sgo, sgo, sn0b)
    slo = k.s()
    k("s_lshl_b32", slo, smat, 14)
    k("s_lshl_b32", st, sw1, 13)
    k("s_add_u32", slo, slo, st)
    sso = k.s()

    vdx = k.v()
    k("v_lshrrev_b32", t0, 3, lane)
    k("v_and_b32", t1, 7, lane)
    k("v_xor_b32", t1, t1, t0)
    k("v_lshlrev_b32", t1, 4, t1)
    k("v_lshl_add_u32", vdx, t0, 10, t1)
    srow = k.s()
    k("s_lshl_b32", srow, smt, 7)
    k("s_lshl_b32", st, swave, 5)
    k("s_add_u32", srow, srow, st)
    sxg = k.s()
    k("s_lshl_b32", sxg, srow, 10)
    sxl = k.s()
    k("s_lshl_b32", sxl, swave, 12)
    k("s_add_u32", sxl, sxl, 32768)

    def dma_list(stage):
        buf = stage % G1_NB
        out = []
        for j in range(8):
            def f(j=j):
                k("s_add_u32", sso, sgo, str((stage * 64 + 4 * j) * 3584))
                k("s_add_u32", "m0", slo, str(buf * G1_STAGE + 4 * j * 256))
                k("buffer_load_dwordx4", vd[(j >> 1) & 1], sW, sso, mod="offen lds")
            out.append(f)
            if j & 1:
                def g(jj=j >> 1):
                    k("s_add_u32", sso, sxg, str(stage * 128 + jj * 8192))
                    k("s_add_u32", "m0", sxl, str(buf * G1_STAGE + jj * 1024))
                    k("buffer_load_dwordx4", vdx, sxn, sso, mod="offen lds")
                out.append(g)
        return out

    def dma(stage):
        for f in dma_list(stage):
            f()

    dma(0)
    dma(1)
    vxr = [k.v(), k.v()]
    k("v_and_b32", t1, 7, i16)
    k("v_xor_b32", t1, t1, kg)
    k("v_lshlrev_b32", t0, 7, i16)
    k("v_add_u32", t0, sxl, t0)
    k("v_lshl_add_u32", vxr[0], t1, 4, t0)
    k("v_xor_b32", t1, 4, t1)
    k("v_lshl_add_u32", vxr[1], t1, 4, t0)
    vxr2 = [k.v(), k.v()]
    k("v_add_u32", vxr2[0], 65536, vxr[0])
    k("v_add_u32", vxr2[1], 65536, vxr[1])
    k("v_add_u32", t0, srow, i16)
    vh = [k.v(), k.v()]
    k("v_mul_u32_u24", t1, 3584, t0)
    k("v_lshl_add_u32", t1, kg, 3, t1)
    k("v_add_u32", vh[0], sn0b, t1)
    k("v_add_u32", vh[1], 16 * 3584, vh[0])
    va = [k.v() for _ in range(7)]
    rr = k.v(); gg = k.v()
    k("v_lshrrev_b32", rr, 2, i16)
    k("v_and_b32", gg, 1, kg)
    k("v_lshl_add_u32", gg, gg, 2, rr)
    k("v_lshl_add_u32", t0, kg, 3, rr)
    k("v_lshlrev_b32", t0, 8, t0)
    k("v_and_b32", t1, 3, i16)
    k("v_lshl_add_u32", t0, t1, 3, t0)
    for t in range(7):
        k("v_xor_b32", t1, t, gg)
        k("v_lshl_add_u32", va[t], t1, 5, t0)
    vb = [k.v() for _ in range(7)]
    for t in range(7):
        k("v_add_u32", vb[t], 65536, va[t])
    ACC = [[[k.v(4) for _ in range(2)] for _ in range(7)] for _ in range(2)]
    R = 6
    WF = [k.v(4) for _ in range(R)]
    XF = [[k.v(4) for _ in range(2)] for _ in range(2)]
    items = [(ks, mat, t) for ks in range(2) for t in range(7) for mat in range(2)]
    for s in range(8):
        buf = s % G1_NB
        k.waitcnt(vm=12 if s < 7 else 0)
        k("s_barrier")
        if s in (0, 1, 4):
            k.stamp()
        pend = dma_list(s + 2) if s + 2 < 8 else []
        base = buf * G1_STAGE
        for ks in range(2):
            for mt in range(2):
                if base + mt * 2048 <= 65535:
                    k("ds_read_b128", XF[ks][mt], vxr[ks], mod=f"offset:{base + mt * 2048}")
                else:
                    k("ds_read_b128", XF[ks][mt], vxr2[ks], mod=f"offset:{base + mt * 2048 - 65536}")

        def rd(i):
            ks, mat, t = items[i]
            off = base + mat * 16384 + ks * 8192
            assert off + 1024 < 65536 or True
            if off + 1024 <= 65535:
                k("ds_read_b64_tr_b16", WF[i % R][0:2], va[t], mod=f"offset:{off}")
                k("ds_read_b64_tr_b16", WF[i % R][2:4], va[t], mod=f"offset:{off + 1024}")
            else:
                k("ds_read_b64_tr_b16", WF[i % R][0:2], vb[t], mod=f"offset:{off - 65536}")
                k("ds_read_b64_tr_b16", WF[i % R][2:4], vb[t], mod=f"offset:{off + 1024 - 65536}")
        for i in range(R - 1):
            rd(i)
        for i, (ks, mat, t) in enumerate(items):
            if i + R - 1 < len(items):
                rd(i + R - 1)
                k.waitcnt(lgkm=2 * (R - 1))
            else:
                k.waitcnt(lgkm=2 * (len(items) - 1 - i))
            for mt in range(2):
                first = (s == 0 and ks == 0)
                k("v_mfma_f32_16x16x32_bf16", ACC[mat][t][mt], WF[i % R], XF[ks][mt], 0 if first else ACC[mat][t][mt])
            if pend and (i % 2 == 0):
                pend.pop(0)()
    k.stamp()
    smask = k.s(); sk1 = k.s(); sk2 = k.s()
    k("s_mov_b32", smask, "0xffff0000")
    k("s_mov_b32", sk1, fl(GK1))
    k("s_mov_b32", sk2, fl(GK2))
    xg = [k.v() for _ in range(4)]; xu = [k.v() for _ in range(4)]; e = [k.v() for _ in range(4)]
    O = [k.v(2), k.v(2)]
    n = 0
    for mt in range(2):
        for t in range(7):
            G = ACC[0][t][mt]; U = ACC[1][t][mt]
            for p in range(2):
                k("v_cvt_pk_bf16_f32", xg[2 * p + 1], G[2 * p], G[2 * p + 1])
                k("v_cvt_pk_bf16_f32", xu[2 * p + 1], U[2 * p], U[2 * p + 1])
                k("v_lshlrev_b32", xg[2 * p], 16, xg[2 * p + 1])
                k("v_and_b32", xg[2 * p + 1], smask, xg[2 * p + 1])
                k("v_lshlrev_b32", xu[2 * p], 16, xu[2 * p + 1])
                k("v_and_b32", xu[2 * p + 1], smask, xu[2 * p + 1])
            for r in range(4):
                k("v_mul_f32", e[r], xg[r], xg[r])
            for r in range(4):
                k("v_fma_f32", e[r], e[r], sk2, sk1) if False else None
                k("v_mul_f32", e[r], sk2, e[r])
            for r in range(4):
                k("v_add_f32", e[r], sk1, e[r])
            for r in range(4):
                k("v_mul_f32", e[r], e[r], xg[r])
            for r in range(4):
                k("v_exp_f32", e[r], e[r])
            for r in range(4):
                k("v_add_f32", e[r], 1.0, e[r])
            for r in range(4):
                k("v_rcp_f32", e[r], e[r])
            for r in range(4):
                k("v_mul_f32", e[r], e[r], xg[r])
            for p in range(2):
                k("v_cvt_pk_bf16_f32", e[2 * p + 1], e[2 * p], e[2 * p + 1])
                k("v_lshlrev_b32", e[2 * p], 16, e[2 * p + 1])
                k("v_and_b32", e[2 * p + 1], smask, e[2 * p + 1])
            for r in range(4):
                k("v_mul_f32", e[r], e[r], xu[r])
            o = O[n & 1]; n += 1
            k("v_cvt_pk_bf16_f32", o[0], e[0], e[1])
            k("v_cvt_pk_bf16_f32", o[1], e[2], e[3])
            k("buffer_store_dwordx2", o, vh[mt], sh, 0, mod=f"offen offset:{t * 32}")


def gen_k2(stamps=False):
    k = Asm()
    k.reset_regs(v0=1, s0=4)
    if stamps:
        k.stamp_init(8)
    k.stamp()
    name = "k2_kernel"
    k("s_cmp_ge_u32", "s2", "256")
    k("s_cbranch_scc1", "K2_END")
    ptr = load_kernargs(k)
    lane = k.v(); wv = k.v(); swave = k.s()
    k("v_and_b32", lane, 63, "v0")
    k("v_lshrrev_b32", wv, 6, "v0")
    k("v_readfirstlane_b32", swave, wv)
    k.waitcnt(lgkm=0)
    swg = k.s()
    k("s_mov_b32", swg, "s2")
    gemm1_body(k, ptr, swg, lane, wv, swave)
    k.stamp()
    k.waitcnt(vm=0)
    k.stamp()
    k.stamp_dump(ptr["dbg"], 5)
    k.label("K2_END")
    k("s_endpgm")
    return name, k, dict(grid=256, block=256, lds=G1_LDS)
```

```python
from asmgen import *
from k1 import *

CPITCH = 4256
CONV_LDS = 2 * 8 * CPITCH


def conv_body(k, ptr, swg, lane, wv, swave, hilo=True):
    sxt = ws_srd(k, ptr, WS_XNT, D * XT_PITCH)
    skh = ws_srd(k, ptr, WS_KH, D * L * 2)
    skl = ws_srd(k, ptr, WS_KL, D * L * 2)
    ski = ws_srd(k, ptr, WS_KINV, D * 4)
    syt = ws_srd(k, ptr, WS_YT, D * L * 2)
    sd = k.s(); sp = k.s(); st = k.s()
    k("s_lshl_b32", sd, swg, 1)
    k("s_lshr_b32", st, swave, 1)
    k("s_add_u32", sd, sd, st)
    k("s_and_b32", sp, swave, 1)
    i16 = k.v(); kg = k.v()
    k("v_and_b32", i16, 15, lane)
    k("v_lshrrev_b32", kg, 4, lane)
    vk = k.v()
    k("v_lshlrev_b32", vk, 6, i16)
    k("v_lshl_add_u32", vk, kg, 4, vk)
    sk = k.s()
    k("s_lshl_b32", sk, sd, 12)
    KH = [k.v(4) for _ in range(4)]
    KL = [k.v(4) for _ in range(4)] if hilo else None
    for t in range(4):
        k("buffer_load_dwordx4", KH[t], vk, skh, sk, mod=f"offen offset:{t * 1024}")
    if hilo:
        for t in range(4):
            k("buffer_load_dwordx4", KL[t], vk, skl, sk, mod=f"offen offset:{t * 1024}")
    vz = k.v()
    k("v_mov_b32", vz, 0)
    kinv = k.v()
    k("s_lshl_b32", st, sd, 2)
    k("buffer_load_dword", kinv, vz, ski, st, mod="offen")
    m0 = k.mark()
    sx = k.s()
    k("s_mul_i32", sx, sd, XT_PITCH)
    k("s_lshl_b32", st, sp, 3)
    k("s_add_u32", sx, sx, st)
    va = k.v()
    k("v_lshlrev_b32", va, 4, lane)
    W = [k.v(8) for _ in range(5)]
    sx4 = k.s()
    k("s_add_u32", sx4, sx, 4096)
    for it in range(5):
        so = sx if it < 4 else sx4
        k("buffer_load_dwordx4", W[it][0:4], va, sxt, so, mod=f"offen offset:{(it & 3) * 1024}")
        k("buffer_load_dwordx4", W[it][4:8], va, sxt, so, mod=f"offen offset:{(it & 3) * 1024 + 16}")
    slb = k.s()
    k("s_mul_i32", slb, swave, 4 * CPITCH)
    vw = k.v()
    k("v_add_u32", vw, slb, va)
    T1 = k.v(4); T2 = k.v(4); T3 = k.v(4)
    sex = k.s(2)
    for it in range(5):
        k.waitcnt(vm=2 * (4 - it))
        w = W[it]
        if it == 4:
            k("v_cmp_gt_u32", "vcc", 4, lane)
            k("s_and_saveexec_b64", sex, "vcc")
        for j in range(4):
            k("v_alignbit_b32", T1[j], w[j + 1], w[j], 16)
            k("v_mov_b32", T2[j], w[j + 1])
            k("v_alignbit_b32", T3[j], w[j + 2], w[j + 1], 16)
        k("ds_write_b128", vw, w[0:4], mod=f"offset:{it * 1024}")
        k("ds_write_b128", vw, T1, mod=f"offset:{it * 1024 + CPITCH}")
        k("ds_write_b128", vw, T2, mod=f"offset:{it * 1024 + 2 * CPITCH}")
        k("ds_write_b128", vw, T3, mod=f"offset:{it * 1024 + 3 * CPITCH}")
        if it == 4:
            k("s_mov_b64", "exec", sex)
    k.release(m0)
    vr = k.v(); t0 = k.v(); t1 = k.v()
    k("v_add_u32", t0, 1, i16)
    k("v_and_b32", t1, 7, t0)
    k("v_mul_u32_u24", vr, CPITCH, t1)
    k("v_lshrrev_b32", t0, 3, t0)
    k("v_sub_u32", t0, t0, kg)
    k("v_add_u32", t0, 3, t0)
    k("v_lshl_add_u32", vr, t0, 4, vr)
    k("s_lshr_b32", st, swave, 1)
    k("s_mul_i32", st, st, 8 * CPITCH)
    sb2 = k.s()
    k("s_lshl_b32", sb2, sp, 5)
    k("s_add_u32", st, st, sb2)
    k("v_add_u32", vr, st, vr)
    k.stamp()
    k.waitcnt(lgkm=0)
    k("s_barrier")
    k.stamp()
    Y = [k.v(4) for _ in range(4)]
    Z = [[k.v(4) for _ in range(4)] for _ in range(2)]
    NA = 8
    A = [k.v(4) for _ in range(NA)]
    seq = [(c0, c1) for c0 in range(16) for c1 in range(4)]
    PF = 6

    def rd(idx):
        c0, c1 = seq[idx]
        k("ds_read_b128", A[idx % NA], vr, mod=f"offset:{64 * (16 * c1 + c0)}")

    def shift_add(c0):
        z = Z[c0 & 1]
        for T in range(4):
            for r in range(4):
                if c0 == 0:
                    k("v_mov_b32", Y[T][r], z[T][r])
                else:
                    k("v_add_f32_dpp", Y[T][r], z[T][r], Y[T][r], mod=f"row_shr:{c0} row_mask:0xf bank_mask:0xf")
                    if T > 0:
                        k("v_add_f32_dpp", Y[T][r], z[T - 1][r], Y[T][r], mod=f"row_shl:{16 - c0} row_mask:0xf bank_mask:0xf")

    for idx in range(PF):
        rd(idx)
    k.waitcnt(vm=0)
    for idx, (c0, c1) in enumerate(seq):
        if idx + PF < len(seq):
            rd(idx + PF)
            k.waitcnt(lgkm=PF)
        else:
            k.waitcnt(lgkm=len(seq) - 1 - idx)
        z = Z[c0 & 1]
        a = A[idx % NA]
        for t in range(4 - c1):
            T = c1 + t
            k("v_mfma_f32_16x16x32_f16", z[T], a, KH[t], z[T] if c1 else 0)
            if hilo:
                k("v_mfma_f32_16x16x32_f16", z[T], a, KL[t], z[T])
        if c1 == 1 and c0 > 0:
            shift_add(c0 - 1)
    shift_add(15)
    k.stamp()
    vo = k.v()
    k("v_lshlrev_b32", vo, 6, i16)
    k("v_lshl_add_u32", vo, kg, 3, vo)
    k("v_add_u32", vo, sb2, vo)
    O = [k.v(2) for _ in range(4)]
    for T in range(4):
        for r in range(4):
            k("v_mul_f32", Y[T][r], Y[T][r], kinv)
        k("v_cvt_pk_bf16_f32", O[T][0], Y[T][0], Y[T][1])
        k("v_cvt_pk_bf16_f32", O[T][1], Y[T][2], Y[T][3])
        k("buffer_store_dwordx2", O[T], vo, syt, sk, mod=f"offen offset:{T * 1024}")


def gen_k3(hilo=True, stamps=False):
    k = Asm()
    k.reset_regs(v0=1, s0=4)
    if stamps:
        k.stamp_init(6)
    k.stamp()
    name = "k3_kernel"
    k("s_cmp_ge_u32", "s2", "256")
    k("s_cbranch_scc1", "K3_END")
    ptr = load_kernargs(k)
    lane = k.v(); wv = k.v(); swave = k.s()
    k("v_and_b32", lane, 63, "v0")
    k("v_lshrrev_b32", wv, 6, "v0")
    k("v_readfirstlane_b32", swave, wv)
    k.waitcnt(lgkm=0)
    swg = k.s()
    k("s_mov_b32", swg, "s2")
    conv_body(k, ptr, swg, lane, wv, swave, hilo)
    k.waitcnt(vm=0)
    k.stamp()
    k.stamp_dump(ptr["dbg"], 5)
    k.label("K3_END")
    k("s_endpgm")
    return name, k, dict(grid=256, block=256, lds=CONV_LDS)
```

```python
import math
from asmgen import *
from k1 import *

RP = 272
G2_PART = 64 * RP
YP = 144
G2_Y = 131072
G2_LDS = G2_Y + 64 * YP
NLOG2E = -math.log2(math.e)


def gemm2_body(k, ptr, swg, lane, wv, swave):
    sh = ws_srd(k, ptr, WS_H, L * F * 2)
    sxn = ws_srd(k, ptr, WS_XN, L * D * 2)
    syt = ws_srd(k, ptr, WS_YT, L * D * 2)
    sW = k.s(4); k.srd(sW, ptr["wd"], F * D * 2)
    sx = k.s(4); k.srd(sx, ptr["u"], L * D * 2)
    sdk = k.s(4); k.srd(sdk, ptr["dsk"], D * 2)
    so = k.s(4); k.srd(so, ptr["out"], L * D * 2)
    st = k.s(); slt = k.s(); sdt = k.s()
    import os
    if os.environ.get("MAPB"):
        k("s_lshr_b32", slt, swg, 3)
        k("s_and_b32", sdt, swg, 7)
    else:
        k("s_and_b32", slt, swg, 7)
        k("s_lshl_b32", slt, slt, 2)
        k("s_lshr_b32", st, swg, 6)
        k("s_add_u32", slt, slt, st)
        k("s_lshr_b32", sdt, swg, 3)
        k("s_and_b32", sdt, sdt, 7)
    i16 = k.v(); kg = k.v()
    k("v_and_b32", i16, 15, lane)
    k("v_lshrrev_b32", kg, 4, lane)
    t0, t1, t2 = k.v(), k.v(), k.v()
    vd = [k.v(), k.v()]
    k("v_bfe_u32", t0, lane, 1, 2)
    k("v_and_b32", t1, 1, kg)
    k("v_xor_b32", t0, t0, t1)
    k("v_and_b32", t2, 1, lane)
    k("v_lshlrev_b32", t2, 4, t2)
    k("v_lshrrev_b32", t1, 3, lane)
    k("v_lshl_add_u32", t2, t1, 10, t2)
    k("v_lshl_add_u32", vd[0], t0, 5, t2)
    k("v_xor_b32", t0, 2, t0)
    k("v_lshl_add_u32", vd[1], t0, 5, t2)
    sgo = k.s()
    k("s_mul_i32", sgo, swave, 448 * 1024)
    k("s_lshl_b32", st, sdt, 7)
    k("s_add_u32", sgo, sgo, st)
    slo = k.s()
    k("s_lshl_b32", slo, swave, 15)
    sso = k.s()
    vdh = k.v()
    k("v_lshrrev_b32", t0, 3, lane)
    k("v_and_b32", t1, 7, lane)
    k("v_xor_b32", t1, t1, t0)
    k("v_lshlrev_b32", t1, 4, t1)
    k("v_mul_u32_u24", t0, 3584, t0)
    k("v_add_u32", vdh, t0, t1)
    sl0 = k.s()
    k("s_lshl_b32", sl0, slt, 6)
    shg = k.s()
    k("s_mul_i32", shg, sl0, 3584)
    k("s_mul_i32", st, swave, 896)
    k("s_add_u32", shg, shg, st)

    def loads(s):
        b = (s & 1) * 16384
        for j in range(8):
            k("s_add_u32", sso, sgo, str((s * 64 + 8 * j) * 1024))
            k("s_add_u32", "m0", slo, str(b + j * 1024))
            k("buffer_load_dwordx4", vd[j & 1], sW, sso, mod="offen lds")
            k("s_add_u32", sso, shg, str(s * 128 + j * 8 * 3584))
            k("s_add_u32", "m0", slo, str(b + 8192 + j * 1024))
            k("buffer_load_dwordx4", vdh, sh, sso, mod="offen lds")

    loads(0)
    ve = k.v(); vy = k.v(); vdk = k.v()
    k("v_lshrrev_b32", t0, 2, "v0")
    k("v_and_b32", t1, 3, "v0")
    k("v_add_u32", t2, sl0, t0)
    k("v_lshlrev_b32", ve, 10, t2)
    k("v_lshl_add_u32", ve, t1, 5, ve)
    k("s_lshl_b32", st, sdt, 7)
    k("v_add_u32", ve, st, ve)
    k("v_lshlrev_b32", vdk, 5, t1)
    k("v_add_u32", vdk, st, vdk)
    sd0 = k.s()
    k("s_lshl_b32", sd0, sdt, 6)
    k("v_add_u32", t2, sd0, t0)
    k("v_lshlrev_b32", vy, 12, t2)
    k("v_lshl_add_u32", vy, t1, 5, vy)
    k("s_lshl_b32", st, slt, 7)
    k("v_add_u32", vy, st, vy)
    EX = k.v(8); EN = k.v(8); ED = k.v(8); EY = k.v(8)
    for (R_, v_, s_) in ((EX, ve, sx), (EN, ve, sxn), (ED, vdk, sdk), (EY, vy, syt)):
        k("buffer_load_dwordx4", R_[0:4], v_, s_, 0, mod="offen")
        k("buffer_load_dwordx4", R_[4:8], v_, s_, 0, mod="offen offset:16")
    vyl = k.v()
    k("v_mul_u32_u24", vyl, YP, t0)
    k("v_lshl_add_u32", vyl, t1, 5, vyl)
    k("v_add_u32", vyl, G2_Y, vyl)
    va = [k.v() for _ in range(4)]
    rr = k.v(); gg = k.v()
    k("v_lshrrev_b32", rr, 2, i16)
    k("v_lshrrev_b32", gg, 1, rr)
    k("v_and_b32", t1, 1, kg)
    k("v_lshl_add_u32", gg, t1, 1, gg)
    k("v_lshl_add_u32", t0, kg, 3, rr)
    k("v_lshlrev_b32", t0, 7, t0)
    k("v_and_b32", t1, 3, i16)
    k("v_lshl_add_u32", t0, t1, 3, t0)
    k("v_add_u32", t0, slo, t0)
    for t in range(4):
        k("v_xor_b32", t1, t, gg)
        k("v_lshl_add_u32", va[t], t1, 5, t0)
    vhr = [k.v(), k.v()]
    k("v_and_b32", t1, 7, i16)
    k("v_xor_b32", t1, t1, kg)
    k("v_lshlrev_b32", t0, 7, i16)
    k("v_add_u32", t0, slo, t0)
    k("v_lshl_add_u32", vhr[0], t1, 4, t0)
    k("v_xor_b32", t1, 4, t1)
    k("v_lshl_add_u32", vhr[1], t1, 4, t0)
    ACC = [[k.v(4) for _ in range(4)] for _ in range(4)]
    WF = [[k.v(4) for _ in range(4)] for _ in range(2)]
    HF = [[k.v(4) for _ in range(4)] for _ in range(4)]

    def rd(s, ks):
        b = (s & 1) * 16384
        for t in range(4):
            off = b + ks * 4096
            k("ds_read_b64_tr_b16", WF[ks][t][0:2], va[t], mod=f"offset:{off}")
            k("ds_read_b64_tr_b16", WF[ks][t][2:4], va[t], mod=f"offset:{off + 512}")
        for lt in range(4):
            k("ds_read_b128", HF[ks][lt], vhr[ks], mod=f"offset:{b + 8192 + lt * 2048}")
    NSTEP = 7
    for s in range(NSTEP):
        if s + 1 < NSTEP:
            loads(s + 1)
            k.waitcnt(vm=16)
        else:
            k.waitcnt(vm=0)
        if s == 0:
            k.stamp()
        rd(s, 0)
        rd(s, 1)
        for ks in range(2):
            k.waitcnt(lgkm=12 if ks == 0 else 0)
            for dt in range(4):
                for lt in range(4):
                    k("v_mfma_f32_16x16x32_bf16", ACC[dt][lt], WF[ks][dt], HF[ks][lt], ACC[dt][lt] if (s or ks) else 0)
    k.stamp()
    k("s_barrier")
    k.stamp()
    vp = k.v()
    k("v_mul_u32_u24", vp, RP, i16)
    k("v_lshl_add_u32", vp, kg, 4, vp)
    k("s_mul_i32", st, swave, G2_PART)
    k("v_add_u32", vp, st, vp)
    for dt in range(4):
        for lt in range(4):
            k("ds_write_b128", vp, ACC[dt][lt], mod=f"offset:{lt * 16 * RP + dt * 64}")
    k("ds_write_b128", vyl, EY[0:4])
    k("ds_write_b128", vyl, EY[4:8], mod="offset:16")
    k.waitcnt(lgkm=0)
    k("s_barrier")
    vq = k.v()
    k("v_lshrrev_b32", t0, 2, "v0")
    k("v_and_b32", t1, 3, "v0")
    k("v_mul_u32_u24", vq, RP, t0)
    k("v_lshl_add_u32", vq, t1, 6, vq)
    PS = HF
    for w in range(4):
        for c in range(4):
            k("ds_read_b128", PS[w][c], vq, mod=f"offset:{w * G2_PART + c * 16}")
    vyr = k.v()
    k("v_mul_u32_u24", vyr, 16 * YP, t1)
    k("v_lshl_add_u32", vyr, t0, 1, vyr)
    k("v_add_u32", vyr, G2_Y, vyr)
    YVl = [WF[0][e >> 2][e & 3] for e in range(16)]
    class _Y:
        def __getitem__(self, e):
            return YVl[e]
    YV = _Y()
    for e in range(16):
        k("ds_read_u16", YV[e], vyr, mod=f"offset:{e * YP}")
    k.waitcnt(lgkm=0)
    smask = k.s(); snl = k.s()
    k("s_mov_b32", smask, "0xffff0000")
    k("s_mov_b32", snl, fl(NLOG2E))
    OUT = EY
    f = [WF[1][0][r] for r in range(4)]; g = [WF[1][1][r] for r in range(4)]; a = [WF[1][2][r] for r in range(4)]; b = [WF[1][3][r] for r in range(4)]

    def unpack(dst2, src):
        k("v_lshlrev_b32", dst2[0], 16, src)
        k("v_and_b32", dst2[1], smask, src)

    for c in range(4):
        for r in range(4):
            k("v_add_f32", f[r], PS[0][c][r], PS[1][c][r])
            k("v_add_f32", g[r], PS[2][c][r], PS[3][c][r])
        for r in range(4):
            k("v_add_f32", f[r], f[r], g[r])
        for p in range(2):
            k("v_cvt_pk_bf16_f32", f[2 * p + 1], f[2 * p], f[2 * p + 1])
            unpack(f[2 * p:2 * p + 2], f[2 * p + 1])
        for r in range(4):
            k("v_mul_f32", g[r], snl, f[r])
        for r in range(4):
            k("v_exp_f32", g[r], g[r])
        for r in range(4):
            k("v_add_f32", g[r], 1.0, g[r])
        for r in range(4):
            k("v_rcp_f32", g[r], g[r])
        for r in range(4):
            k("v_mul_f32", g[r], g[r], f[r])
        for p in range(2):
            k("v_cvt_pk_bf16_f32", g[2 * p + 1], g[2 * p], g[2 * p + 1])
            unpack(g[2 * p:2 * p + 2], g[2 * p + 1])
        for p in range(2):
            unpack(a[2 * p:2 * p + 2], EN[2 * c + p])
            unpack(b[2 * p:2 * p + 2], ED[2 * c + p])
        for r in range(4):
            k("v_mul_f32", a[r], a[r], b[r])
        for p in range(2):
            k("v_cvt_pk_bf16_f32", a[2 * p + 1], a[2 * p], a[2 * p + 1])
            unpack(a[2 * p:2 * p + 2], a[2 * p + 1])
        for r in range(4):
            k("v_lshlrev_b32", b[r], 16, YV[4 * c + r])
        for r in range(4):
            k("v_add_f32", a[r], a[r], b[r])
        for p in range(2):
            k("v_cvt_pk_bf16_f32", a[2 * p + 1], a[2 * p], a[2 * p + 1])
            unpack(a[2 * p:2 * p + 2], a[2 * p + 1])
        for r in range(4):
            k("v_mul_f32", a[r], a[r], g[r])
        for p in range(2):
            k("v_cvt_pk_bf16_f32", a[2 * p + 1], a[2 * p], a[2 * p + 1])
            unpack(a[2 * p:2 * p + 2], a[2 * p + 1])
        for p in range(2):
            unpack(b[2 * p:2 * p + 2], EX[2 * c + p])
        for r in range(4):
            k("v_add_f32", a[r], a[r], b[r])
        for p in range(2):
            k("v_cvt_pk_bf16_f32", OUT[2 * c + p], a[2 * p], a[2 * p + 1])
    k("buffer_store_dwordx4", OUT[0:4], ve, so, 0, mod="offen")
    k("buffer_store_dwordx4", OUT[4:8], ve, so, 0, mod="offen offset:16")


def gen_k4(stamps=False):
    k = Asm()
    k.reset_regs(v0=1, s0=4)
    if stamps:
        k.stamp_init(6)
    k.stamp()
    name = "k4_kernel"
    k("s_cmp_ge_u32", "s2", "256")
    k("s_cbranch_scc1", "K4_END")
    ptr = load_kernargs(k)
    lane = k.v(); wv = k.v(); swave = k.s()
    k("v_and_b32", lane, 63, "v0")
    k("v_lshrrev_b32", wv, 6, "v0")
    k("v_readfirstlane_b32", swave, wv)
    k.waitcnt(lgkm=0)
    swg = k.s()
    k("s_mov_b32", swg, "s2")
    gemm2_body(k, ptr, swg, lane, wv, swave)
    k.stamp()
    k.waitcnt(vm=0)
    k.stamp()
    k.stamp_dump(ptr["dbg"], 5)
    k.label("K4_END")
    k("s_endpgm")
    return name, k, dict(grid=256, block=256, lds=G2_LDS)
```

```python
import copy
import struct


class Reg:
    __slots__ = ("k", "i", "n")

    def __init__(self, k, i, n=1):
        self.k, self.i, self.n = k, i, n

    def __str__(self):
        if self.n == 1:
            return f"{self.k}{self.i}"
        return f"{self.k}[{self.i}:{self.i + self.n - 1}]"

    __repr__ = __str__

    def __getitem__(self, j):
        if isinstance(j, slice):
            a = j.start or 0
            b = self.n if j.stop is None else j.stop
            assert 0 <= a < b <= self.n, (a, b, self.n)
            return Reg(self.k, self.i + a, b - a)
        assert 0 <= j < self.n, (j, self.n)
        return Reg(self.k, self.i + j, 1)

    def keys(self):
        return [(self.k, self.i + j) for j in range(self.n)]


class Mod:
    def __init__(self, r, fmt):
        self.r, self.fmt = r, fmt

    def __str__(self):
        return self.fmt.format(self.r)


def neg(r):
    return Mod(r, "-{}")


def absm(r):
    return Mod(r, "|{}|")


def f2u(x):
    return struct.unpack("<I", struct.pack("<f", x))[0]


def fl(x):
    return "0x%08x" % f2u(x)


TRANS = ("v_exp_f32", "v_log_f32", "v_rcp_f32", "v_rsq_f32", "v_sqrt_f32", "v_sin_f32", "v_cos_f32",
         "v_rcp_iflag_f32", "v_exp_f16", "v_rcp_f16")

XDL_RW = {2: 5, 4: 8, 8: 12, 16: 20}
XDL_C_SAME = {2: 2, 4: 0, 8: 0, 16: 0}
XDL_C_OVL = {2: 4, 4: 6, 8: 10, 16: 18}
XDL_SG_C = {2: 3, 4: 6, 8: 10, 16: 18}
SG_RW = {2: 4, 4: 6, 8: 10, 16: 18}
SG_C_SAME = {2: 2, 4: 0, 8: 0, 16: 0}
SG_C_OVL = {2: 2, 4: 4, 8: 8, 16: 16}
XDL_C_WAR = {2: 1, 4: 3, 8: 7, 16: 15}


def mfma_info(mn):
    if mn.endswith("16x16x4_f32"):
        return ("sg", 8)
    if mn.endswith("32x32x2_f32"):
        return ("sg", 16)
    if "16x16x32" in mn:
        return ("xdl", 4)
    if "32x32x16" in mn:
        return ("xdl", 8)
    raise ValueError(mn)


class HState:
    def __init__(self):
        self.t = 0
        self.vw = {}
        self.mw = {}
        self.mc = {}
        self.sw = {}
        self.m0 = None
        self.st = {}
        self.ex = None


class Asm:
    def __init__(self):
        self.lines = []
        self.h = HState()
        self.vnext = 0
        self.snext = 0
        self.vmax = 0
        self.smax = 0
        self.nlabel = 0
        self.nops = 0

    def reset_regs(self, v0=1, s0=4):
        self.vnext, self.snext = v0, s0
        self.vmax, self.smax = v0, s0

    def v(self, n=1, align=None):
        al = align or (1 if n == 1 else (2 if n == 2 else 4 if n % 4 == 0 else 2))
        i = (self.vnext + al - 1) // al * al
        self.vnext = i + n
        self.vmax = max(self.vmax, self.vnext)
        assert self.vnext <= 256, "out of vgprs"
        return Reg("v", i, n)

    def s(self, n=1, align=None):
        al = align or (1 if n == 1 else (2 if n == 2 else 4))
        i = (self.snext + al - 1) // al * al
        self.snext = i + n
        self.smax = max(self.smax, self.snext)
        assert self.snext <= 100, "out of sgprs"
        return Reg("s", i, n)

    def mark(self):
        return (self.vnext, self.snext)

    def release(self, m):
        self.vnext, self.snext = m

    def raw(self, s):
        self.lines.append(s)

    def comment(self, s):
        self.lines.append("    ; " + s)

    def label(self, name):
        self.lines.append(name + ":")

    _uid = [0]

    def newlabel(self, base="L"):
        Asm._uid[0] += 1
        return f"{base}_{Asm._uid[0]}"

    def nop(self, states):
        while states > 0:
            n = min(states, 16)
            self.lines.append(f"    s_nop {n - 1}")
            self.h.t += n
            self.nops += n
            states -= n

    @staticmethod
    def _keys(op):
        if isinstance(op, Mod):
            op = op.r
        if isinstance(op, Reg):
            return op.keys()
        if isinstance(op, str) and op in ("vcc", "exec", "m0"):
            return [op]
        return []

    def __call__(self, mn, *ops, mod=""):
        h = self.h
        need = 0
        import re as _re
        mo = _re.search(r"offset:(\d+)", mod)
        if mo:
            lim = 65535 if mn.startswith("ds_") else 4095
            assert int(mo.group(1)) <= lim, (mn, mod)

        def req(tprod, n):
            nonlocal need
            need = max(need, tprod + n + 1)

        K = self._keys
        isv = lambda k: isinstance(k, tuple) and k[0] in ("v", "a")
        iss = lambda k: (isinstance(k, tuple) and k[0] == "s") or k == "vcc"
        vreads, vwrites, sreads_valu, swrites_valu = [], [], [], []
        kind = None
        is_dpp = ("quad_perm" in mod) or ("row_" in mod) or ("wave_" in mod)
        if mn.startswith("v_mfma"):
            kind = "mfma"
        elif mn.startswith("v_"):
            kind = "valu"
        elif mn.startswith("ds_"):
            kind = "ds"
        elif mn.startswith("buffer_") or mn.startswith("global_") or mn.startswith("flat_"):
            kind = "vmem"
        else:
            kind = "salu"

        def mfma_d_hazard_for_rw(key):
            e = h.mw.get(key)
            if e:
                t, cls, p, _ = e
                req(t, (XDL_RW if cls == "xdl" else SG_RW)[p])

        if kind == "valu":
            if mn.startswith("v_cmp"):
                dst = K(ops[0]); srcs = [k for o in ops[1:] for k in K(o)]
                swrites_valu = dst
                assert not mn.startswith("v_cmpx")
            elif mn in ("v_readfirstlane_b32", "v_readlane_b32"):
                swrites_valu = K(ops[0])
                srcs = K(ops[1])
                for k in srcs:
                    if k in h.vw:
                        req(h.vw[k][0], 1)
                if mn == "v_readlane_b32":
                    for k in K(ops[2]):
                        if k in h.sw:
                            req(h.sw[k], 4)
            elif mn.startswith("v_permlane"):
                vwrites = K(ops[0]) + K(ops[1])
                srcs = list(vwrites)
                for k in srcs:
                    if k in h.vw:
                        req(h.vw[k][0], 2)
            elif "_co_" in mn:
                vwrites = K(ops[0]); swrites_valu = K(ops[1])
                srcs = [k for o in ops[2:] for k in K(o)]
            else:
                vwrites = K(ops[0])
                srcs = [k for o in ops[1:] for k in K(o)]
                if mn.startswith("v_fmac") or mn.startswith("v_dot2c") or mn.startswith("v_pk_fmac") or is_dpp:
                    srcs = srcs + vwrites
            if is_dpp:
                for k in K(ops[1]):
                    if k in h.vw:
                        req(h.vw[k][0], 2)
                if h.ex is not None:
                    req(h.ex, 5)
            istrans = mn in TRANS
            for k in srcs:
                if isv(k):
                    mfma_d_hazard_for_rw(k)
                    e = h.vw.get(k)
                    if e and e[1] and not istrans:
                        req(e[0], 1)
                elif iss(k):
                    if k in h.sw:
                        req(h.sw[k], 2)
            for k in vwrites:
                mfma_d_hazard_for_rw(k)
                if k in h.mc:
                    req(h.mc[k][0], XDL_C_WAR[h.mc[k][1]])
                if k in h.st:
                    req(h.st[k], 2)
        elif kind == "mfma":
            cls, p = mfma_info(mn)
            d = ops[0]
            for o in ops[1:3]:
                for k in K(o):
                    if k in h.vw:
                        req(h.vw[k][0], 2)
                    mfma_d_hazard_for_rw(k)
            c = ops[3]
            if isinstance(c, Reg):
                for k in c.keys():
                    if k in h.vw:
                        req(h.vw[k][0], 2)
                    e = h.mw.get(k)
                    if e:
                        t, pcls, pp, rg = e
                        same = rg == (c.k, c.i, c.n) and pcls == cls and pp == p
                        if pcls == "xdl":
                            if cls == "xdl":
                                req(t, (XDL_C_SAME if same else XDL_C_OVL)[pp])
                            else:
                                req(t, XDL_SG_C[pp])
                        else:
                            if cls == "sg":
                                req(t, (SG_C_SAME if same else SG_C_OVL)[pp])
            for k in d.keys():
                e = h.mw.get(k)
                if e and not (isinstance(c, Reg) and (c.k, c.i, c.n) == (d.k, d.i, d.n)):
                    t, pcls, pp, rg = e
                    req(t, (XDL_C_OVL if pcls == "xdl" else SG_C_OVL)[pp])
                if k in h.st:
                    req(h.st[k], 2)
            if h.ex is not None:
                req(h.ex, 4)
        elif kind in ("ds", "vmem"):
            reads, writes = [], []
            sregs = []
            lds_dma = kind == "vmem" and (" lds" in (" " + mod) or "load_lds" in mn)
            if kind == "ds":
                if mn.startswith("ds_read") or "permute" in mn or "swizzle" in mn:
                    writes = K(ops[0]); reads = [k for o in ops[1:] for k in K(o)]
                else:
                    reads = [k for o in ops for k in K(o)]
            else:
                if mn.startswith("buffer_load") and not lds_dma:
                    writes = K(ops[0]); rest = ops[1:]
                elif mn.startswith("global_load") and not lds_dma:
                    writes = K(ops[0]); rest = ops[1:]
                else:
                    rest = ops
                allk = [k for o in rest for k in K(o)]
                reads = [k for k in allk if isv(k)]
                sregs = [k for k in allk if iss(k)]
                if lds_dma and h.m0 is not None:
                    req(h.m0, 1)
            for k in reads:
                if isv(k):
                    mfma_d_hazard_for_rw(k)
            for k in writes:
                mfma_d_hazard_for_rw(k)
                if k in h.st:
                    req(h.st[k], 1)
            for k in sregs:
                if k in h.sw:
                    req(h.sw[k], 5)
        if need > h.t:
            self.nop(need - h.t)
        t = h.t
        if kind == "valu":
            istrans = mn in TRANS
            for k in vwrites:
                h.vw[k] = (t, istrans)
                h.mw.pop(k, None)
            for k in swrites_valu:
                if k == "exec":
                    h.ex = t
                else:
                    h.sw[k] = t
        elif kind == "mfma":
            cls, p = mfma_info(mn)
            d = ops[0]
            for k in d.keys():
                h.mw[k] = (t, cls, p, (d.k, d.i, d.n))
                h.vw.pop(k, None)
            if cls == "xdl" and isinstance(ops[3], Reg):
                for k in ops[3].keys():
                    h.mc[k] = (t, p)
        elif kind in ("ds", "vmem"):
            if kind == "vmem" and ("store_dwordx4" in mn or "store_dwordx3" in mn):
                data = ops[0] if mn.startswith("buffer") else ops[1]
                for k in K(data):
                    h.st[k] = t
            if (kind == "ds" and mn.startswith("ds_read")) or (kind == "vmem" and "load" in mn and not lds_dma):
                for k in K(ops[0]):
                    h.vw.pop(k, None)
                    h.mw.pop(k, None)
        else:
            if ops and isinstance(ops[0], str) and ops[0] == "m0":
                h.m0 = t
            elif ops:
                for k in K(ops[0]):
                    h.sw.pop(k, None)
        h.t = t + 1
        txt = "    " + mn
        if ops:
            txt += " " + ", ".join(str(o) for o in ops)
        if mod:
            txt += " " + mod
        self.lines.append(txt)

    def clear(self):
        h = self.h
        need = 0
        for k, (t, tr) in h.vw.items():
            need = max(need, t + 2 + 1)
        for k, (t, cls, p, _) in h.mw.items():
            need = max(need, t + (XDL_RW if cls == "xdl" else SG_RW)[p] + 1)
        for k, (t, p) in h.mc.items():
            need = max(need, t + XDL_C_WAR[p] + 1)
        for k, t in h.sw.items():
            need = max(need, t + 5 + 1)
        for k, t in h.st.items():
            need = max(need, t + 2 + 1)
        if h.m0 is not None:
            need = max(need, h.m0 + 2)
        if h.ex is not None:
            need = max(need, h.ex + 6)
        if need > h.t:
            self.nop(need - h.t)

    def loop(self, body):
        st0 = copy.deepcopy(self.h)
        saved = self.lines
        m = (self.vnext, self.snext, self.nlabel, self.nops)
        self.lines = []
        body()
        st1 = self.h
        shift = st1.t - st0.t
        mg = copy.deepcopy(st0)
        for name in ("vw", "mw", "mc", "sw", "st"):
            d0 = getattr(mg, name)
            for k, e in getattr(st1, name).items():
                if isinstance(e, tuple):
                    e2 = (e[0] - shift,) + tuple(e[1:])
                    if k not in d0 or d0[k][0] < e2[0]:
                        d0[k] = e2
                else:
                    e2 = e - shift
                    if k not in d0 or d0[k] < e2:
                        d0[k] = e2
        for name in ("m0", "ex"):
            e = getattr(st1, name)
            if e is not None:
                e2 = e - shift
                o = getattr(mg, name)
                if o is None or o < e2:
                    setattr(mg, name, e2)
        self.h = mg
        self.lines = saved
        self.vnext, self.snext, self.nlabel, self.nops = m
        body()

    def stamp_init(self, n=12):
        self.stamps = [self.s(2) for _ in range(n)]
        self.nstamp = 0

    def stamp(self, wait=True):
        if not getattr(self, "stamps", None):
            return
        self("s_memtime", self.stamps[self.nstamp])
        self.nstamp += 1

    def stamp_real(self):
        if not getattr(self, "stamps", None):
            return
        self("s_memrealtime", self.stamps[self.nstamp])
        self.nstamp += 1

    def stamp_dump(self, dbgptr, wg):
        if not getattr(self, "stamps", None):
            return
        lab = self.newlabel("NOST")
        self.waitcnt(lgkm=0)
        self("s_cmp_lg_u32", "s2", str(wg))
        self("s_cbranch_scc1", lab)
        sd = self.s(4)
        self.srd(sd, dbgptr, 256)
        vt = self.v(); vo = self.v()
        self("v_lshlrev_b32", vo, 6, "v0")
        self("v_lshlrev_b32", vo, 4, vo)
        for j in range(self.nstamp):
            self("v_mov_b32", vt, self.stamps[j][0])
            self("buffer_store_dword", vt, vo, sd, 0, mod=f"offen offset:{4 * j}")
        self.label(lab)

    def waitcnt(self, vm=None, lgkm=None):
        parts = []
        if vm is not None:
            parts.append(f"vmcnt({vm})")
        if lgkm is not None:
            parts.append(f"lgkmcnt({lgkm})")
        self.lines.append("    s_waitcnt " + " ".join(parts))
        self.h.t += 1

    def srd(self, dst, base, nbytes):
        self("s_mov_b32", dst[0], base[0])
        self("s_and_b32", dst[1], base[1], "0xffff")
        self("s_mov_b32", dst[2], str(nbytes))
        self("s_mov_b32", dst[3], "0x00020000")

    def text(self):
        return "\n".join(self.lines) + "\n"


def kernel_header(name):
    return (f".globl {name}\n.p2align 8\n.type {name},@function\n{name}:\n")


def kernel_desc(name, vgpr, sgpr, accum=None):
    vg = max(vgpr, 8)
    acc = accum if accum is not None else (vg + 3) // 4 * 4
    return (f".p2align 6\n.amdhsa_kernel {name}\n"
            f"  .amdhsa_next_free_vgpr {vg}\n"
            f"  .amdhsa_next_free_sgpr {max(sgpr, 16)}\n"
            f"  .amdhsa_accum_offset {acc}\n"
            f"  .amdhsa_group_segment_fixed_size 0\n"
            f"  .amdhsa_kernarg_size 112\n"
            f"  .amdhsa_user_sgpr_count 2\n"
            f"  .amdhsa_user_sgpr_kernarg_segment_ptr 1\n"
            f"  .amdhsa_system_sgpr_workgroup_id_x 1\n"
            f"  .amdhsa_float_denorm_mode_32 3\n"
            f".end_amdhsa_kernel\n")
```

```python
import math
import struct
import numpy as np
from asmgen import *

L, D, N, F = 2048, 512, 128, 1792
WS_XN = 0
WS_XNT = 2 << 20
XT_PITCH = 4160
WS_KH = 5 << 20
WS_KL = 7 << 20
WS_KINV = 9 << 20
WS_H = 10 << 20
WS_YT = 18 << 20
WS_END = 21 << 20

LN_WGS = 64
KG_WGS = 256
K1_WGS = LN_WGS + KG_WGS
LN_PITCH = 1056
K1_LDS = 32 * LN_PITCH


def f32(x):
    return float(np.float32(x))


def split(x):
    hi = f32(x)
    lo = f32(x - hi)
    return hi, lo


L2E_HI, L2E_LO = split(math.log2(math.e))
I2P_HI, I2P_LO = split(1.0 / (2 * math.pi))
LN2 = math.log(2.0)


def load_kernargs(k):
    P = k.s(16, align=4)
    Q = k.s(8, align=4)
    R = k.s(4, align=4)
    k("s_load_dwordx16", P, "s[0:1]", "0")
    k("s_load_dwordx8", Q, "s[0:1]", "64")
    k("s_load_dwordx4", R, "s[0:1]", "96")
    ptr = {}
    names = ["u", "lar", "ai", "cr", "ci", "ldt", "dsk", "bx"]
    for j, nm in enumerate(names):
        ptr[nm] = P[2 * j:2 * j + 2]
    for j, nm in enumerate(["wg", "wu", "wd", "out"]):
        ptr[nm] = Q[2 * j:2 * j + 2]
    ptr["dbg"] = R[0:2]
    ptr["ws"] = R[2:4]
    return ptr


def ws_srd(k, ptr, off, nbytes):
    d = k.s(4)
    k("s_add_u32", d[0], ptr["ws"][0], str(off))
    k("s_addc_u32", d[1], ptr["ws"][1], "0")
    k("s_and_b32", d[1], d[1], "0xffff")
    k("s_mov_b32", d[2], str(nbytes))
    k("s_mov_b32", d[3], "0x00020000")
    return d


def reduce64_sum(k, regs, tmps, op="v_add_f32"):
    for pat in ("quad_perm:[1,0,3,2]", "quad_perm:[2,3,0,1]", "row_half_mirror", "row_mirror"):
        for r in regs:
            k(op + "_dpp", r, r, r, mod=pat + " row_mask:0xf bank_mask:0xf")
    for sw in ("v_permlane16_swap_b32", "v_permlane32_swap_b32"):
        for r, t in zip(regs, tmps):
            k("v_mov_b32", t, r)
        for r, t in zip(regs, tmps):
            k(sw, r, t)
        for r, t in zip(regs, tmps):
            k(op, r, r, t)


def bf16r(k, dst, src):
    k("v_cvt_pk_bf16_f32", dst, src, src)
    k("v_lshlrev_b32", dst, 16, dst)


def exp_precise(k, dst, x, t0, t1, sc):
    k("v_mul_f32", t0, sc["l2e_hi"], x)
    k("v_fma_f32", t1, x, sc["l2e_hi"], neg(t0))
    k("v_fma_f32", t1, x, sc["l2e_lo"], t1)
    k("v_exp_f32", dst, t0)
    k("v_mul_f32", t1, sc["ln2"], t1)
    k("v_fma_f32", dst, dst, t1, dst)


def gen_k1(hilo=True, stamps=False):
    k = Asm()
    k.reset_regs(v0=1, s0=4)
    name = "k1_kernel"
    if stamps:
        k.stamp_init(5)
    k.stamp()
    k("s_cmp_ge_u32", "s2", str(K1_WGS))
    k("s_cbranch_scc1", "K1_END")
    ptr = load_kernargs(k)
    lane = k.v()
    wv = k.v()
    swave = k.s()
    k("v_and_b32", lane, 63, "v0")
    k("v_lshrrev_b32", wv, 6, "v0")
    k("v_readfirstlane_b32", swave, wv)
    k.waitcnt(lgkm=0)
    k("s_cmp_ge_u32", "s2", str(LN_WGS))
    k.clear()
    k("s_cbranch_scc1", "K1_KGEN")
    base_mark = k.mark()
    sx = k.s(4)
    k.srd(sx, ptr["u"], L * D * 2)
    sxn = ws_srd(k, ptr, WS_XN, L * D * 2)
    sxt = ws_srd(k, ptr, WS_XNT, D * XT_PITCH)
    srow = k.s()
    k("s_lshl_b32", srow, "s2", 15)
    st = k.s()
    k("s_lshl_b32", st, swave, 13)
    k("s_add_u32", srow, srow, st)
    srow4 = k.s()
    k("s_add_u32", srow4, srow, 4096)
    voff = k.v()
    k("v_lshlrev_b32", voff, 4, lane)
    X = [k.v(4) for _ in range(8)]
    for r in range(8):
        k("buffer_load_dwordx4", X[r], voff, sx, srow if r < 4 else srow4, mod=f"offen offset:{(r & 3) * 1024}")
    sones = k.s()
    k("s_mov_b32", sones, "0x3f803f80")
    smask = k.s()
    k("s_mov_b32", smask, "0xffff0000")
    S = [k.v() for _ in range(8)]
    T = [k.v() for _ in range(8)]
    for r in range(8):
        k.waitcnt(vm=7 - r)
        k("v_dot2_f32_bf16", S[r], X[r][0], sones, 0)
        for j in range(1, 4):
            k("v_dot2_f32_bf16", S[r], X[r][j], sones, S[r])
    reduce64_sum(k, S, T)
    mean = S
    for r in range(8):
        k("v_mul_f32", mean[r], fl(1.0 / 512), S[r])
    Fv = [k.v(8) for _ in range(8)]
    SS = [k.v() for _ in range(8)]
    for r in range(8):
        for j in range(4):
            k("v_lshlrev_b32", Fv[r][2 * j], 16, X[r][j])
            k("v_and_b32", Fv[r][2 * j + 1], smask, X[r][j])
    for j in range(8):
        for r in range(8):
            k("v_sub_f32", T[r], Fv[r][j], mean[r])
            if j == 0:
                k("v_mul_f32", SS[r], T[r], T[r])
            else:
                k("v_fma_f32", SS[r], T[r], T[r], SS[r])
    reduce64_sum(k, SS, T)
    den = SS
    rc = [k.v() for _ in range(8)]
    for r in range(8):
        k("v_mul_f32", den[r], fl(1.0 / 512), SS[r])
    for r in range(8):
        bf16r(k, den[r], den[r])
    for r in range(8):
        k("v_add_f32", den[r], fl(1e-5), den[r])
    for r in range(8):
        bf16r(k, den[r], den[r])
    for r in range(8):
        k("v_sqrt_f32", den[r], den[r])
    for r in range(8):
        bf16r(k, den[r], den[r])
    for r in range(8):
        k("v_rcp_f32", rc[r], den[r])
    for r in range(8):
        bf16r(k, mean[r], mean[r])
    vlds = k.v()
    k("v_mul_u32_u24", vlds, LN_PITCH * 8, wv)
    k("v_add_u32", vlds, vlds, voff)
    H = k.v(4)
    a0, a1, q0, q1, e0, e1 = [k.v() for _ in range(6)]
    for r in range(8):
        O = X[r]
        for j in range(4):
            k("v_sub_f32", a0, Fv[r][2 * j], mean[r])
            k("v_sub_f32", a1, Fv[r][2 * j + 1], mean[r])
            k("v_cvt_pk_bf16_f32", a1, a0, a1)
            k("v_lshlrev_b32", a0, 16, a1)
            k("v_and_b32", a1, smask, a1)
            k("v_mul_f32", q0, a0, rc[r])
            k("v_mul_f32", q1, a1, rc[r])
            k("v_fma_f32", e0, neg(q0), den[r], a0)
            k("v_fma_f32", e1, neg(q1), den[r], a1)
            k("v_fma_f32", q0, e0, rc[r], q0)
            k("v_fma_f32", q1, e1, rc[r], q1)
            k("v_cvt_pk_bf16_f32", O[j], q0, q1)
            k("v_lshlrev_b32", q0, 16, O[j])
            k("v_and_b32", q1, smask, O[j])
            k("v_cvt_pkrtz_f16_f32", H[j], q0, q1)
        k("buffer_store_dwordx4", O, voff, sxn, srow if r < 4 else srow4, mod=f"offen offset:{(r & 3) * 1024}")
        k("ds_write_b128", vlds, H, mod=f"offset:{r * LN_PITCH}")
    k.waitcnt(lgkm=0)
    k("s_barrier")
    g = k.v(); i16 = k.v(); rr = k.v(); cc = k.v(); vrd = k.v(); vst = k.v()
    k("v_lshrrev_b32", g, 4, lane)
    k("v_and_b32", i16, 15, lane)
    k("v_lshrrev_b32", rr, 2, i16)
    k("v_and_b32", cc, 3, i16)
    k("v_lshl_add_u32", rr, g, 3, rr)
    k("v_mul_u32_u24", vrd, LN_PITCH, rr)
    k("v_lshl_add_u32", vrd, cc, 3, vrd)
    k("v_lshl_add_u32", vrd, wv, 8, vrd)
    k("v_lshl_add_u32", vst, wv, 7, i16)
    k("v_mul_u32_u24", vst, XT_PITCH, vst)
    k("v_lshl_add_u32", vst, g, 4, vst)
    sl0 = k.s()
    k("s_lshl_b32", sl0, "s2", 6)
    k("s_add_u32", sl0, sl0, 64)
    zz = k.v(4)
    for j in range(4):
        k("v_mov_b32", zz[j], 0)
    vzp = k.v(); vzt = k.v()
    k("v_lshrrev_b32", vzp, 2, "v0")
    k("v_mul_u32_u24", vzp, XT_PITCH, vzp)
    k("v_and_b32", vzt, 3, "v0")
    k("v_lshl_add_u32", vzp, vzt, 4, vzp)
    szp = k.s()
    k("s_mul_i32", szp, "s2", 8 * XT_PITCH)
    sex = k.s(2)
    k("v_cmp_gt_u32", "vcc", 32, "v0")
    k("s_and_saveexec_b64", sex, "vcc")
    k("s_cbranch_execz", "K1_NOZ")
    k("buffer_store_dwordx4", zz, vzp, sxt, szp, mod="offen")
    k.label("K1_NOZ")
    k("s_mov_b64", "exec", sex)
    TT = [k.v(4) for _ in range(8)]
    for b in range(8):
        k("ds_read_b64_tr_b16", TT[b][0:2], vrd, mod=f"offset:{b * 32}")
        k("ds_read_b64_tr_b16", TT[b][2:4], vrd, mod=f"offset:{b * 32 + 4 * LN_PITCH}")
    for b in range(8):
        k.waitcnt(lgkm=14 - 2 * b)
        k("buffer_store_dwordx4", TT[b], vst, sxt, sl0, mod="offen")
        if b < 7:
            k("v_add_u32", vst, 16 * XT_PITCH, vst)
    k("s_endpgm")

    k.release(base_mark)
    k.label("K1_KGEN")
    sc = {}
    for nm, val in (("l2e_hi", L2E_HI), ("l2e_lo", L2E_LO), ("ln2", LN2), ("i2p_hi", I2P_HI), ("i2p_lo", I2P_LO)):
        sc[nm] = k.s()
        k("s_mov_b32", sc[nm], fl(val))
    smask = k.s()
    k("s_mov_b32", smask, "0xffff0000")
    sd = k.s()
    shw = k.s()
    k("s_sub_u32", sd, "s2", LN_WGS)
    k("s_lshl_b32", sd, sd, 1)
    st = k.s()
    k("s_lshr_b32", st, swave, 1)
    k("s_add_u32", sd, sd, st)
    k("s_and_b32", shw, swave, 1)
    srds = {}
    for nm in ("lar", "ai", "cr", "ci"):
        srds[nm] = k.s(4)
        k.srd(srds[nm], ptr[nm], D * N * 2)
    sldt = k.s(4)
    k.srd(sldt, ptr["ldt"], D * 2)
    skh = ws_srd(k, ptr, WS_KH, D * L * 2)
    skl = ws_srd(k, ptr, WS_KL, D * L * 2)
    ski = ws_srd(k, ptr, WS_KINV, D * 4)
    i16 = k.v(); q = k.v()
    k("v_and_b32", i16, 15, lane)
    k("v_lshrrev_b32", q, 4, lane)
    soff = k.s()
    k("s_lshl_b32", soff, sd, 8)
    k("s_lshl_b32", st, shw, 7)
    k("s_add_u32", soff, soff, st)
    voff = k.v()
    k("v_lshlrev_b32", voff, 5, q)
    PAR = {}
    for nm in ("lar", "ai", "cr", "ci"):
        PAR[nm] = k.v(8)
        k("buffer_load_dwordx4", PAR[nm][0:4], voff, srds[nm], soff, mod="offen")
        k("buffer_load_dwordx4", PAR[nm][4:8], voff, srds[nm], soff, mod="offen offset:16")
    vz = k.v()
    k("v_mov_b32", vz, 0)
    ldt = k.v()
    k("s_lshl_b32", st, sd, 1)
    k("buffer_load_ushort", ldt, vz, sldt, st, mod="offen")
    pF = k.v()
    k("v_lshlrev_b32", pF, 3, i16)
    k("v_cvt_f32_u32", pF, pF)
    pR = [k.v() for _ in range(3)]
    t0, t1, t2 = k.v(), k.v(), k.v()
    k("v_lshlrev_b32", t0, 1, i16)
    k("v_add_u32", t0, 240, t0)
    k("v_and_b32", t1, 1, i16)
    k("v_lshlrev_b32", t1, 2, t1)
    k("v_bfe_u32", t2, i16, 1, 1)
    k("v_lshl_add_u32", t1, t2, 8, t1)
    k("v_add_u32", t1, 512, t1)
    k("v_cmp_gt_u32", "vcc", 8, i16)
    k("v_cndmask_b32", pR[0], t0, i16, "vcc")
    k("v_cmp_gt_u32", "vcc", 12, i16)
    k("v_cndmask_b32", pR[0], t1, pR[0], "vcc")
    k("v_add_u32", pR[1], 128, pR[0])
    k("v_lshlrev_b32", pR[2], 7, i16)
    k("v_add_u32", pR[2], 1024, pR[2])
    for r in range(3):
        k("v_cvt_f32_u32", pR[r], pR[r])
    dt = k.v(); ndl = k.v(); dt2 = k.v()
    k.waitcnt(vm=0)
    k.stamp()
    k("v_lshlrev_b32", ldt, 16, ldt)
    exp_precise(k, dt, ldt, t0, t1, sc)
    bf16r(k, dt, dt)
    k("v_mul_f32", ndl, sc["l2e_hi"], dt)
    k("v_sub_f32", ndl, 0, ndl)
    k("v_add_f32", dt2, dt, dt)
    Dacc = [k.v(4) for _ in range(3)]
    lar, ai, cr, ci = k.v(), k.v(), k.v(), k.v()
    ar2, whi, wlo = k.v(), k.v(), k.v()
    B1, B2 = k.v(), k.v()
    mag = [k.v() for _ in range(4)]; rv = [k.v() for _ in range(4)]; tt = [k.v() for _ in range(4)]
    Er = [k.v() for _ in range(4)]
    Ei = [k.v() for _ in range(4)]
    PS = [pR[0], pR[1], pR[2], pF]
    PRM = [dict(ar2=k.v(), whi=k.v(), wlo=k.v(), cr=k.v(), ci=k.v()) for _ in range(2)]

    def prep(s):
        P = PRM[s & 1]
        ops = []
        for nm, dst in (("lar", lar), ("ai", ai), ("cr", P["cr"]), ("ci", P["ci"])):
            src = PAR[nm][s >> 1]
            if s & 1:
                ops.append(lambda dst=dst, src=src: k("v_and_b32", dst, smask, src))
            else:
                ops.append(lambda dst=dst, src=src: k("v_lshlrev_b32", dst, 16, src))
        a = P["ar2"]
        ops += [
            lambda: k("v_mul_f32", t0, sc["l2e_hi"], lar),
            lambda: k("v_mul_f32", ai, ai, dt),
            lambda: k("v_fma_f32", t1, lar, sc["l2e_hi"], neg(t0)),
            lambda: k("v_mul_f32", P["whi"], sc["i2p_hi"], ai),
            lambda: k("v_fma_f32", t1, lar, sc["l2e_lo"], t1),
            lambda: k("v_exp_f32", a, t0),
            lambda: k("v_fma_f32", P["wlo"], ai, sc["i2p_hi"], neg(P["whi"])),
            lambda: k("v_mul_f32", t1, sc["ln2"], t1),
            lambda: k("v_fma_f32", P["wlo"], ai, sc["i2p_lo"], P["wlo"]),
            lambda: k("v_fma_f32", a, a, t1, a),
            lambda: k("v_mul_f32", P["cr"], P["cr"], dt2),
            lambda: k("v_cvt_pk_bf16_f32", a, a, a),
            lambda: k("v_mul_f32", P["ci"], P["ci"], dt2),
            lambda: k("v_lshlrev_b32", a, 16, a),
            lambda: k("v_mul_f32", a, a, ndl),
        ]
        return ops

    for f in prep(0):
        f()
    for s in range(16):
        P = PRM[s & 1]
        nxt = prep(s + 1) if s < 15 else []

        def fill(n=2):
            for _ in range(n):
                if nxt:
                    nxt.pop(0)()
        for j in range(4):
            k("v_mul_f32", mag[j], P["ar2"], PS[j])
        for j in range(4):
            k("v_mul_f32", rv[j], P["whi"], PS[j])
        for j in range(4):
            k("v_exp_f32", mag[j], mag[j])
        for j in range(4):
            k("v_fma_f32", tt[j], P["whi"], PS[j], neg(rv[j]))
        fill()
        for j in range(4):
            k("v_fma_f32", tt[j], P["wlo"], PS[j], tt[j])
        for j in range(4):
            k("v_fract_f32", rv[j], rv[j])
        fill()
        for j in range(4):
            k("v_add_f32", rv[j], rv[j], tt[j])
        fill()
        for j in range(4):
            k("v_sin_f32", Ei[j], rv[j])
            fill(1)
        for j in range(4):
            k("v_cos_f32", Er[j], rv[j])
            fill(1)
        for j in (3, 0, 1, 2):
            k("v_mul_f32", Ei[j], mag[j], Ei[j])
            k("v_mul_f32", Er[j], mag[j], Er[j])
        fill()
        k("v_mul_f32", B1, P["ci"], Ei[3])
        k("v_mul_f32", B2, P["cr"], Ei[3])
        k("v_fma_f32", B1, P["cr"], Er[3], neg(B1))
        k("v_fma_f32", B2, neg(P["ci"]), Er[3], neg(B2))
        fill(20)
        for r in range(3):
            k("v_mfma_f32_16x16x4_f32", Dacc[r], Er[r], B1, Dacc[r] if s else 0)
        for r in range(3):
            k("v_mfma_f32_16x16x4_f32", Dacc[r], Ei[r], B2, Dacc[r])
    k.stamp()
    sreg = k.s()
    k("s_lshr_b32", sreg, swave, 1)
    k("s_lshl_b32", sreg, sreg, 13)
    vb = k.v()
    k("v_mul_u32_u24", vb, 48, lane)
    k("v_add_u32", vb, sreg, vb)
    k("s_cmp_eq_u32", shw, 0)
    k.clear()
    k("s_cbranch_scc1", "K1_KG_A")
    for r in range(3):
        k("ds_write_b128", vb, Dacc[r], mod=f"offset:{16 * r}")
    k.waitcnt(lgkm=0)
    k("s_barrier")
    k("s_branch", "K1_KG_B")
    k.label("K1_KG_A")
    k("s_barrier")
    P2 = [k.v(4) for _ in range(3)]
    for r in range(3):
        k("ds_read_b128", P2[r], vb, mod=f"offset:{16 * r}")
    k.waitcnt(lgkm=0)
    for r in range(3):
        for j in range(4):
            k("v_add_f32", Dacc[r][j], Dacc[r][j], P2[r][j])
    mx = k.v(); mt = k.v()
    k("v_max3_f32", mx, absm(Dacc[0][0]), absm(Dacc[0][1]), absm(Dacc[0][2]))
    vals = [Dacc[r][j] for r in range(3) for j in range(4)][3:]
    for a in range(0, 8, 2):
        k("v_max3_f32", mx, absm(vals[a]), absm(vals[a + 1]), mx)
    k("v_max_f32", mx, absm(vals[8]), mx)
    reduce64_sum(k, [mx], [mt], op="v_max_f32")
    scl = k.v(); inv = k.v()
    k("v_bfe_u32", t0, mx, 23, 8)
    k("v_sub_u32", t1, 268, t0)
    k("v_mov_b32", t2, 240)
    k("v_med3_i32", t1, t1, 14, t2)
    k("v_lshlrev_b32", scl, 23, t1)
    k("v_sub_u32", t1, 254, t1)
    k("v_lshlrev_b32", inv, 23, t1)
    k("s_lshl_b32", st, sd, 2)
    k("buffer_store_dword", inv, vz, ski, st, mod="offen")
    ub = k.v(); us = k.v(); uadd = k.v()
    k("v_lshlrev_b32", t0, 2, q)
    k("v_lshl_add_u32", t0, i16, 3, t0)
    k("v_lshlrev_b32", t1, 2, i16)
    k("v_add_u32", t1, 256, t1)
    k("v_mov_b32", t2, 384)
    k("v_lshl_add_u32", t2, i16, 1, t2)
    k("v_cmp_gt_u32", "vcc", 2, q)
    k("v_cndmask_b32", ub, t1, t0, "vcc")
    k("v_mov_b32", uadd, 64)
    k("v_mov_b32", t0, 128)
    k("v_cndmask_b32", uadd, uadd, t0, "vcc")
    k("v_cmp_gt_u32", "vcc", 3, q)
    k("v_cndmask_b32", ub, t2, ub, "vcc")
    k("v_mov_b32", t0, 32)
    k("v_cndmask_b32", uadd, t0, uadd, "vcc")
    jx = k.v()
    k("v_mov_b32", t0, 62)
    k("v_mov_b32", t1, 0)
    k("v_cndmask_b32", jx, t0, t1, "vcc")
    k("v_lshlrev_b32", ub, 1, ub)
    k("v_add_u32", ub, sreg, ub)
    k("v_lshlrev_b32", uadd, 1, uadd)
    k("v_lshlrev_b32", jx, 1, jx)
    a_t0lo = ub
    a_t0hi = k.v(); a_t1lo = k.v(); a_t1hi = k.v(); a_t2 = k.v()
    k("v_add_u32", a_t0hi, ub, jx)
    k("v_add_u32", a_t1lo, ub, uadd)
    k("v_add_u32", a_t1hi, a_t1lo, jx)
    k("v_lshl_add_u32", a_t2, q, 6, i16)
    k("v_lshlrev_b32", a_t2, 1, a_t2)
    k("v_add_u32", a_t2, sreg, a_t2)
    hv = k.v(); lv = k.v()
    for r in range(3):
        for j in range(4):
            k("v_mul_f32", t0, Dacc[r][j], scl)
            k("v_cvt_f16_f32", hv, t0)
            if r < 2:
                addr = ((a_t0lo, a_t0hi), (a_t1lo, a_t1hi))[r][j >> 1]
                off = 2 * j
            else:
                addr = a_t2
                off = 1024 + 32 * j
            k("ds_write_b16", addr, hv, mod=f"offset:{3072 + off}")
            if hilo:
                k("v_cvt_f32_f16", t1, hv)
                k("v_sub_f32", t1, t0, t1)
                k("v_cvt_f16_f32", lv, t1)
                k("ds_write_b16", addr, lv, mod=f"offset:{4608 + off}")
    k.waitcnt(lgkm=0)
    k.clear()
    k.label("K1_KG_B")
    k("s_barrier")
    vl = k.v()
    k("v_lshlrev_b32", vl, 4, lane)
    k("s_lshl_b32", st, shw, 10)
    k("v_add_u32", vl, st, vl)
    OH = k.v(8); OL = k.v(8)
    RH = k.v(16); RL = k.v(16)
    ua = [k.v() for _ in range(4)]
    for e in range(16):
        grp, j = e >> 3, e & 7
        pos = grp * 8 + (7 - j)
        a = ua[e & 3]
        k("v_add_u32", t0, e, vl)
        k("v_cvt_f32_u32", t1, t0)
        k("v_cvt_pk_bf16_f32", t1, t1, t1)
        k("v_and_b32", t1, "0xffff", t1)
        k("v_subrev_u32", t1, 17024, t1)
        k("v_cmp_gt_u32", "vcc", 128, t0)
        k("v_cndmask_b32", t1, t1, t0, "vcc")
        k("v_lshlrev_b32", a, 1, t1)
        k("v_add_u32", a, sreg, a)
        k("ds_read_u16", RH[pos], a, mod="offset:3072")
        if hilo:
            k("ds_read_u16", RL[pos], a, mod="offset:4608")
    k.waitcnt(lgkm=0)
    for j in range(8):
        k("v_lshl_or_b32", OH[j], RH[2 * j + 1], 16, RH[2 * j])
        if hilo:
            k("v_lshl_or_b32", OL[j], RL[2 * j + 1], 16, RL[2 * j])
    vst = k.v()
    k("v_lshlrev_b32", vst, 1, vl)
    k("s_lshl_b32", st, sd, 12)
    k.waitcnt(lgkm=0)
    k("buffer_store_dwordx4", OH[0:4], vst, skh, st, mod="offen")
    k("buffer_store_dwordx4", OH[4:8], vst, skh, st, mod="offen offset:16")
    if hilo:
        k("buffer_store_dwordx4", OL[0:4], vst, skl, st, mod="offen")
        k("buffer_store_dwordx4", OL[4:8], vst, skl, st, mod="offen offset:16")
    k.stamp()
    k.waitcnt(vm=0)
    k.stamp()
    k.stamp_dump(ptr["dbg"], 100)
    k.label("K1_END")
    k("s_endpgm")
    return name, k, dict(grid=K1_WGS, block=256, lds=K1_LDS)
```

```python
import math
from asmgen import *
from k1 import *

G1_STAGE = 49152
G1_NB = 2
G1_LDS = G1_STAGE * G1_NB
GK1 = -2.0 * math.log2(math.e) * math.sqrt(2.0 / math.pi)
GK2 = GK1 * 0.044715


def gemm1_body(k, ptr, swg, lane, wv, swave):
    sxn = ws_srd(k, ptr, WS_XN, L * D * 2)
    sh = ws_srd(k, ptr, WS_H, L * F * 2)
    smat = k.s(); sw1 = k.s(); st = k.s()
    k("s_lshr_b32", smat, swave, 1)
    k("s_and_b32", sw1, swave, 1)
    sW = k.s(4)
    k("s_cmp_eq_u32", smat, 0)
    k("s_cselect_b32", sW[0], ptr["wg"][0], ptr["wu"][0])
    k("s_cselect_b32", sW[1], ptr["wg"][1], ptr["wu"][1])
    k("s_and_b32", sW[1], sW[1], "0xffff")
    k("s_mov_b32", sW[2], str(D * F * 2))
    k("s_mov_b32", sW[3], "0x00020000")
    smt = k.s(); snt = k.s()
    k("s_lshr_b32", smt, swg, 4)
    k("s_and_b32", snt, swg, 15)
    sn0b = k.s()
    k("s_mul_i32", sn0b, snt, 224)
    i16 = k.v(); kg = k.v()
    k("v_and_b32", i16, 15, lane)
    k("v_lshrrev_b32", kg, 4, lane)
    vd = [k.v(), k.v()]
    t0, t1, t2 = k.v(), k.v(), k.v()
    k("v_lshrrev_b32", t0, 1, i16)
    k("v_xor_b32", t0, t0, kg)
    k("v_and_b32", t2, 1, i16)
    k("v_lshlrev_b32", t2, 4, t2)
    k("v_mul_u32_u24", t1, 3584, kg)
    k("v_add_u32", t2, t2, t1)
    for b in range(2):
        if b:
            k("v_xor_b32", t0, 4, t0)
        k("v_cmp_eq_u32", "vcc", 7, t0)
        k("v_cndmask_b32", t1, t0, 0, "vcc") if False else None
        k("v_mov_b32", t1, 0)
        k("v_cndmask_b32", t1, t0, t1, "vcc")
        k("v_lshl_add_u32", vd[b], t1, 5, t2)
    sgo = k.s()
    k("s_mul_i32", sgo, sw1, 32 * 3584)
    k("s_add_u32", sgo, sgo, sn0b)
    slo = k.s()
    k("s_lshl_b32", slo, smat, 14)
    k("s_lshl_b32", st, sw1, 13)
    k("s_add_u32", slo, slo, st)
    sso = k.s()

    vdx = k.v()
    k("v_lshrrev_b32", t0, 3, lane)
    k("v_and_b32", t1, 7, lane)
    k("v_xor_b32", t1, t1, t0)
    k("v_lshlrev_b32", t1, 4, t1)
    k("v_lshl_add_u32", vdx, t0, 10, t1)
    srow = k.s()
    k("s_lshl_b32", srow, smt, 7)
    k("s_lshl_b32", st, swave, 5)
    k("s_add_u32", srow, srow, st)
    sxg = k.s()
    k("s_lshl_b32", sxg, srow, 10)
    sxl = k.s()
    k("s_lshl_b32", sxl, swave, 12)
    k("s_add_u32", sxl, sxl, 32768)

    def dma_list(stage):
        buf = stage % G1_NB
        out = []
        for j in range(8):
            def f(j=j):
                k("s_add_u32", sso, sgo, str((stage * 64 + 4 * j) * 3584))
                k("s_add_u32", "m0", slo, str(buf * G1_STAGE + 4 * j * 256))
                k("buffer_load_dwordx4", vd[(j >> 1) & 1], sW, sso, mod="offen lds")
            out.append(f)
            if j & 1:
                def g(jj=j >> 1):
                    k("s_add_u32", sso, sxg, str(stage * 128 + jj * 8192))
                    k("s_add_u32", "m0", sxl, str(buf * G1_STAGE + jj * 1024))
                    k("buffer_load_dwordx4", vdx, sxn, sso, mod="offen lds")
                out.append(g)
        return out

    def dma(stage):
        for f in dma_list(stage):
            f()

    dma(0)
    vxr = [k.v(), k.v()]
    k("v_and_b32", t1, 7, i16)
    k("v_xor_b32", t1, t1, kg)
    k("v_lshlrev_b32", t0, 7, i16)
    k("v_add_u32", t0, sxl, t0)
    k("v_lshl_add_u32", vxr[0], t1, 4, t0)
    k("v_xor_b32", t1, 4, t1)
    k("v_lshl_add_u32", vxr[1], t1, 4, t0)
    vxr2 = [k.v(), k.v()]
    k("v_add_u32", vxr2[0], 65536, vxr[0])
    k("v_add_u32", vxr2[1], 65536, vxr[1])
    k("v_add_u32", t0, srow, i16)
    vh = [k.v(), k.v()]
    k("v_mul_u32_u24", t1, 3584, t0)
    k("v_lshl_add_u32", t1, kg, 3, t1)
    k("v_add_u32", vh[0], sn0b, t1)
    k("v_add_u32", vh[1], 16 * 3584, vh[0])
    va = [k.v() for _ in range(7)]
    rr = k.v(); gg = k.v()
    k("v_lshrrev_b32", rr, 2, i16)
    k("v_and_b32", gg, 1, kg)
    k("v_lshl_add_u32", gg, gg, 2, rr)
    k("v_lshl_add_u32", t0, kg, 3, rr)
    k("v_lshlrev_b32", t0, 8, t0)
    k("v_and_b32", t1, 3, i16)
    k("v_lshl_add_u32", t0, t1, 3, t0)
    for t in range(7):
        k("v_xor_b32", t1, t, gg)
        k("v_lshl_add_u32", va[t], t1, 5, t0)
    vb = [k.v() for _ in range(7)]
    for t in range(7):
        k("v_add_u32", vb[t], 65536, va[t])
    ACC = [[[k.v(4) for _ in range(2)] for _ in range(7)] for _ in range(2)]
    R = 6
    WF = [k.v(4) for _ in range(R)]
    XF = [[k.v(4) for _ in range(2)] for _ in range(2)]
    items = [(ks, mat, t) for ks in range(2) for t in range(7) for mat in range(2)]
    for s in range(8):
        buf = s % G1_NB
        k.waitcnt(vm=0)
        k("s_barrier")
        if s in (0, 1, 4):
            k.stamp()
        pend = dma_list(s + 1) if s + 1 < 8 else []
        base = buf * G1_STAGE
        for ks in range(2):
            for mt in range(2):
                if base + mt * 2048 <= 65535:
                    k("ds_read_b128", XF[ks][mt], vxr[ks], mod=f"offset:{base + mt * 2048}")
                else:
                    k("ds_read_b128", XF[ks][mt], vxr2[ks], mod=f"offset:{base + mt * 2048 - 65536}")

        def rd(i):
            ks, mat, t = items[i]
            off = base + mat * 16384 + ks * 8192
            assert off + 1024 < 65536 or True
            if off + 1024 <= 65535:
                k("ds_read_b64_tr_b16", WF[i % R][0:2], va[t], mod=f"offset:{off}")
                k("ds_read_b64_tr_b16", WF[i % R][2:4], va[t], mod=f"offset:{off + 1024}")
            else:
                k("ds_read_b64_tr_b16", WF[i % R][0:2], vb[t], mod=f"offset:{off - 65536}")
                k("ds_read_b64_tr_b16", WF[i % R][2:4], vb[t], mod=f"offset:{off + 1024 - 65536}")
        for i in range(R - 1):
            rd(i)
        for i, (ks, mat, t) in enumerate(items):
            if i + R - 1 < len(items):
                rd(i + R - 1)
                k.waitcnt(lgkm=2 * (R - 1))
            else:
                k.waitcnt(lgkm=2 * (len(items) - 1 - i))
            for mt in range(2):
                first = (s == 0 and ks == 0)
                k("v_mfma_f32_16x16x32_bf16", ACC[mat][t][mt], WF[i % R], XF[ks][mt], 0 if first else ACC[mat][t][mt])
            if pend:
                pend.pop(0)()
    k.stamp()
    smask = k.s(); sk1 = k.s(); sk2 = k.s()
    k("s_mov_b32", smask, "0xffff0000")
    k("s_mov_b32", sk1, fl(GK1))
    k("s_mov_b32", sk2, fl(GK2))
    xg = [k.v() for _ in range(4)]; xu = [k.v() for _ in range(4)]; e = [k.v() for _ in range(4)]
    O = [k.v(2), k.v(2)]
    n = 0
    for mt in range(2):
        for t in range(7):
            G = ACC[0][t][mt]; U = ACC[1][t][mt]
            for p in range(2):
                k("v_cvt_pk_bf16_f32", xg[2 * p + 1], G[2 * p], G[2 * p + 1])
                k("v_cvt_pk_bf16_f32", xu[2 * p + 1], U[2 * p], U[2 * p + 1])
                k("v_lshlrev_b32", xg[2 * p], 16, xg[2 * p + 1])
                k("v_and_b32", xg[2 * p + 1], smask, xg[2 * p + 1])
                k("v_lshlrev_b32", xu[2 * p], 16, xu[2 * p + 1])
                k("v_and_b32", xu[2 * p + 1], smask, xu[2 * p + 1])
            for r in range(4):
                k("v_mul_f32", e[r], xg[r], xg[r])
            for r in range(4):
                k("v_fma_f32", e[r], e[r], sk2, sk1) if False else None
                k("v_mul_f32", e[r], sk2, e[r])
            for r in range(4):
                k("v_add_f32", e[r], sk1, e[r])
            for r in range(4):
                k("v_mul_f32", e[r], e[r], xg[r])
            for r in range(4):
                k("v_exp_f32", e[r], e[r])
            for r in range(4):
                k("v_add_f32", e[r], 1.0, e[r])
            for r in range(4):
                k("v_rcp_f32", e[r], e[r])
            for r in range(4):
                k("v_mul_f32", e[r], e[r], xg[r])
            for p in range(2):
                k("v_cvt_pk_bf16_f32", e[2 * p + 1], e[2 * p], e[2 * p + 1])
                k("v_lshlrev_b32", e[2 * p], 16, e[2 * p + 1])
                k("v_and_b32", e[2 * p + 1], smask, e[2 * p + 1])
            for r in range(4):
                k("v_mul_f32", e[r], e[r], xu[r])
            o = O[n & 1]; n += 1
            k("v_cvt_pk_bf16_f32", o[0], e[0], e[1])
            k("v_cvt_pk_bf16_f32", o[1], e[2], e[3])
            k("buffer_store_dwordx2", o, vh[mt], sh, 0, mod=f"offen offset:{t * 32}")


def gen_k2(stamps=False):
    k = Asm()
    k.reset_regs(v0=1, s0=4)
    if stamps:
        k.stamp_init(8)
    k.stamp()
    name = "k2_kernel"
    k("s_cmp_ge_u32", "s2", "256")
    k("s_cbranch_scc1", "K2_END")
    ptr = load_kernargs(k)
    lane = k.v(); wv = k.v(); swave = k.s()
    k("v_and_b32", lane, 63, "v0")
    k("v_lshrrev_b32", wv, 6, "v0")
    k("v_readfirstlane_b32", swave, wv)
    k.waitcnt(lgkm=0)
    swg = k.s()
    k("s_mov_b32", swg, "s2")
    gemm1_body(k, ptr, swg, lane, wv, swave)
    k.stamp()
    k.waitcnt(vm=0)
    k.stamp()
    k.stamp_dump(ptr["dbg"], 5)
    k.label("K2_END")
    k("s_endpgm")
    return name, k, dict(grid=256, block=256, lds=G1_LDS)


def gen_k23(stamps=False, hilo=True):
    import k3
    k = Asm()
    k.reset_regs(v0=1, s0=4)
    if stamps:
        k.stamp_init(8)
    k.stamp()
    name = "k23_kernel"
    k("s_cmp_ge_u32", "s2", "256")
    k("s_cbranch_scc1", "K23_END")
    ptr = load_kernargs(k)
    lane = k.v(); wv = k.v(); swave = k.s()
    k("v_and_b32", lane, 63, "v0")
    k("v_lshrrev_b32", wv, 6, "v0")
    k("v_readfirstlane_b32", swave, wv)
    k.waitcnt(lgkm=0)
    swg = k.s()
    k("s_mov_b32", swg, "s2")
    k("s_cmp_ge_u32", swave, 4)
    k.clear()
    k("s_cbranch_scc1", "K23_CONV")
    mk = k.mark()
    gemm1_body(k, ptr, swg, lane, wv, swave)
    k.stamp()
    k.waitcnt(vm=0)
    k.stamp()
    k.stamp_dump(ptr["dbg"], 5)
    k("s_endpgm")
    k.release(mk)
    k.label("K23_CONV")
    sv = k.stamps if stamps else None
    k.stamps = None
    k("s_sub_u32", swave, swave, 4)
    k3.conv_body(k, ptr, swg, lane, wv, swave, hilo, lbase=G1_LDS, nbar=7)
    k.label("K23_END")
    k("s_endpgm")
    return name, k, dict(grid=256, block=512, lds=G1_LDS + k3.CONV_LDS)
```

```python
from asmgen import *
from k1 import *

CPITCH = 4256
CONV_LDS = 2 * 4 * CPITCH


def conv_body(k, ptr, swg, lane, wv, swave, hilo=True, lbase=0, nbar=0):
    sxt = ws_srd(k, ptr, WS_XNT, D * XT_PITCH)
    skh = ws_srd(k, ptr, WS_KH, D * L * 2)
    skl = ws_srd(k, ptr, WS_KL, D * L * 2)
    ski = ws_srd(k, ptr, WS_KINV, D * 4)
    syt = ws_srd(k, ptr, WS_YT, D * L * 2)
    sd = k.s(); sp = k.s(); st = k.s()
    k("s_lshl_b32", sd, swg, 1)
    k("s_lshr_b32", st, swave, 1)
    k("s_add_u32", sd, sd, st)
    k("s_and_b32", sp, swave, 1)
    i16 = k.v(); kg = k.v()
    k("v_and_b32", i16, 15, lane)
    k("v_lshrrev_b32", kg, 4, lane)
    vk = k.v()
    k("v_lshlrev_b32", vk, 6, i16)
    k("v_lshl_add_u32", vk, kg, 4, vk)
    sk = k.s()
    k("s_lshl_b32", sk, sd, 12)
    KH = [k.v(4) for _ in range(4)]
    KL = [k.v(4) for _ in range(4)] if hilo else None
    for t in range(4):
        k("buffer_load_dwordx4", KH[t], vk, skh, sk, mod=f"offen offset:{t * 1024}")
    if hilo:
        for t in range(4):
            k("buffer_load_dwordx4", KL[t], vk, skl, sk, mod=f"offen offset:{t * 1024}")
    vz = k.v()
    k("v_mov_b32", vz, 0)
    kinv = k.v()
    k("s_lshl_b32", st, sd, 2)
    k("buffer_load_dword", kinv, vz, ski, st, mod="offen")
    m0 = k.mark()
    sx = k.s()
    k("s_mul_i32", sx, sd, XT_PITCH)
    k("s_lshl_b32", st, sp, 2)
    k("s_add_u32", sx, sx, st)
    va = k.v()
    k("v_lshlrev_b32", va, 4, lane)
    W = [k.v(8) for _ in range(5)]
    sx4 = k.s()
    k("s_add_u32", sx4, sx, 4096)
    for it in range(5):
        so = sx if it < 4 else sx4
        k("buffer_load_dwordx4", W[it][0:4], va, sxt, so, mod=f"offen offset:{(it & 3) * 1024}")
        k("buffer_load_dwordx4", W[it][4:8], va, sxt, so, mod=f"offen offset:{(it & 3) * 1024 + 16}")
    if nbar:
        k("s_barrier")
        nbar -= 1
    slb = k.s()
    k("s_mul_i32", slb, swave, 2 * CPITCH)
    k("s_add_u32", slb, slb, str(lbase))
    vw = k.v()
    k("v_add_u32", vw, slb, va)
    T1 = k.v(4)
    sex = k.s(2)
    for it in range(5):
        k.waitcnt(vm=2 * (4 - it))
        w = W[it]
        if it == 4:
            k("v_cmp_gt_u32", "vcc", 4, lane)
            k("s_and_saveexec_b64", sex, "vcc")
        for j in range(4):
            k("v_alignbit_b32", T1[j], w[j + 1], w[j], 16)
        k("ds_write_b128", vw, w[0:4], mod=f"offset:{it * 1024}")
        k("ds_write_b128", vw, T1, mod=f"offset:{it * 1024 + CPITCH}")
        if it == 4:
            k("s_mov_b64", "exec", sex)
    k.release(m0)
    vr = k.v(); t0 = k.v(); t1 = k.v()
    k("v_add_u32", t0, 1, i16)
    k("v_and_b32", t1, 3, t0)
    k("v_mul_u32_u24", vr, CPITCH, t1)
    k("v_lshrrev_b32", t0, 2, t0)
    k("v_add_u32", t0, 6, t0)
    k("v_lshlrev_b32", t1, 1, kg)
    k("v_sub_u32", t0, t0, t1)
    k("v_lshl_add_u32", vr, t0, 3, vr)
    k("s_lshr_b32", st, swave, 1)
    k("s_mul_i32", st, st, 4 * CPITCH)
    sb2 = k.s()
    k("s_lshl_b32", sb2, sp, 5)
    k("s_add_u32", st, st, sb2)
    k("s_add_u32", st, st, str(lbase))
    k("v_add_u32", vr, st, vr)
    k.stamp()
    k.waitcnt(lgkm=0)
    k("s_barrier")
    k.stamp()
    vr2 = k.v()
    k("v_add_u32", vr2, 2048, vr)
    Y = [k.v(4) for _ in range(4)]
    Z = [[k.v(4) for _ in range(4)] for _ in range(2)]
    NA = 8
    A = [k.v(4) for _ in range(NA)]
    seq = [(c0, c1) for c0 in range(16) for c1 in range(4)]
    PF = 6

    def rd(idx):
        c0, c1 = seq[idx]
        o8 = 8 * (16 * c1 + c0)
        if o8 + 1 <= 255:
            k("ds_read2_b64", A[idx % NA], vr, mod=f"offset0:{o8} offset1:{o8 + 1}")
        else:
            k("ds_read2_b64", A[idx % NA], vr2, mod=f"offset0:{o8 - 256} offset1:{o8 - 255}")

    def shift_add(c0):
        z = Z[c0 & 1]
        for T in range(4):
            for r in range(4):
                if c0 == 0:
                    k("v_mov_b32", Y[T][r], z[T][r])
                else:
                    k("v_add_f32_dpp", Y[T][r], z[T][r], Y[T][r], mod=f"row_shr:{c0} row_mask:0xf bank_mask:0xf")
                    if T > 0:
                        k("v_add_f32_dpp", Y[T][r], z[T - 1][r], Y[T][r], mod=f"row_shl:{16 - c0} row_mask:0xf bank_mask:0xf")

    barsleft = [nbar]
    for idx in range(PF):
        rd(idx)
    k.waitcnt(vm=0)
    for idx, (c0, c1) in enumerate(seq):
        if idx + PF < len(seq):
            rd(idx + PF)
            k.waitcnt(lgkm=PF)
        else:
            k.waitcnt(lgkm=len(seq) - 1 - idx)
        z = Z[c0 & 1]
        a = A[idx % NA]
        for t in range(4 - c1):
            T = c1 + t
            k("v_mfma_f32_16x16x32_f16", z[T], a, KH[t], z[T] if c1 else 0)
            if hilo:
                k("v_mfma_f32_16x16x32_f16", z[T], a, KL[t], z[T])
        if c1 == 1 and c0 > 0:
            shift_add(c0 - 1)
        if nbar and c1 == 3 and (c0 in (2, 4, 6, 9, 11, 13)) and barsleft[0] > 0:
            k("s_barrier")
            barsleft[0] -= 1
    shift_add(15)
    k.stamp()
    vo = k.v()
    k("v_lshlrev_b32", vo, 6, i16)
    k("v_lshl_add_u32", vo, kg, 3, vo)
    k("v_add_u32", vo, sb2, vo)
    O = [k.v(2) for _ in range(4)]
    for T in range(4):
        for r in range(4):
            k("v_mul_f32", Y[T][r], Y[T][r], kinv)
        k("v_cvt_pk_bf16_f32", O[T][0], Y[T][0], Y[T][1])
        k("v_cvt_pk_bf16_f32", O[T][1], Y[T][2], Y[T][3])
        k("buffer_store_dwordx2", O[T], vo, syt, sk, mod=f"offen offset:{T * 1024}")


def gen_k3(hilo=True, stamps=False):
    k = Asm()
    k.reset_regs(v0=1, s0=4)
    if stamps:
        k.stamp_init(8)
    k.stamp()
    k.stamp_real()
    name = "k3_kernel"
    k("s_cmp_ge_u32", "s2", "256")
    k("s_cbranch_scc1", "K3_END")
    ptr = load_kernargs(k)
    lane = k.v(); wv = k.v(); swave = k.s()
    k("v_and_b32", lane, 63, "v0")
    k("v_lshrrev_b32", wv, 6, "v0")
    k("v_readfirstlane_b32", swave, wv)
    k.waitcnt(lgkm=0)
    swg = k.s()
    k("s_mov_b32", swg, "s2")
    conv_body(k, ptr, swg, lane, wv, swave, hilo)
    k.waitcnt(vm=0)
    k.stamp()
    k.stamp_real()
    k.stamp_dump(ptr["dbg"], 5)
    k.label("K3_END")
    k("s_endpgm")
    return name, k, dict(grid=256, block=256, lds=CONV_LDS)
```

```python
import copy
import struct


class Reg:
    __slots__ = ("k", "i", "n")

    def __init__(self, k, i, n=1):
        self.k, self.i, self.n = k, i, n

    def __str__(self):
        if self.n == 1:
            return f"{self.k}{self.i}"
        return f"{self.k}[{self.i}:{self.i + self.n - 1}]"

    __repr__ = __str__

    def __getitem__(self, j):
        if isinstance(j, slice):
            a = j.start or 0
            b = self.n if j.stop is None else j.stop
            assert 0 <= a < b <= self.n, (a, b, self.n)
            return Reg(self.k, self.i + a, b - a)
        assert 0 <= j < self.n, (j, self.n)
        return Reg(self.k, self.i + j, 1)

    def keys(self):
        return [(self.k, self.i + j) for j in range(self.n)]


class Mod:
    def __init__(self, r, fmt):
        self.r, self.fmt = r, fmt

    def __str__(self):
        return self.fmt.format(self.r)


def neg(r):
    return Mod(r, "-{}")


def absm(r):
    return Mod(r, "|{}|")


def f2u(x):
    return struct.unpack("<I", struct.pack("<f", x))[0]


def fl(x):
    return "0x%08x" % f2u(x)


TRANS = ("v_exp_f32", "v_log_f32", "v_rcp_f32", "v_rsq_f32", "v_sqrt_f32", "v_sin_f32", "v_cos_f32",
         "v_rcp_iflag_f32", "v_exp_f16", "v_rcp_f16")

XDL_RW = {2: 5, 4: 8, 8: 12, 16: 20}
XDL_C_SAME = {2: 2, 4: 0, 8: 0, 16: 0}
XDL_C_OVL = {2: 4, 4: 6, 8: 10, 16: 18}
XDL_SG_C = {2: 3, 4: 6, 8: 10, 16: 18}
SG_RW = {2: 4, 4: 6, 8: 10, 16: 18}
SG_C_SAME = {2: 2, 4: 0, 8: 0, 16: 0}
SG_C_OVL = {2: 2, 4: 4, 8: 8, 16: 16}
XDL_C_WAR = {2: 1, 4: 3, 8: 7, 16: 15}


def mfma_info(mn):
    if mn.endswith("16x16x4_f32"):
        return ("sg", 8)
    if mn.endswith("32x32x2_f32"):
        return ("sg", 16)
    if "16x16x32" in mn:
        return ("xdl", 4)
    if "32x32x16" in mn:
        return ("xdl", 8)
    raise ValueError(mn)


class HState:
    def __init__(self):
        self.t = 0
        self.vw = {}
        self.mw = {}
        self.mc = {}
        self.sw = {}
        self.m0 = None
        self.st = {}
        self.ex = None
        self.dl = {}


class Asm:
    def __init__(self):
        self.lines = []
        self.h = HState()
        self.vnext = 0
        self.snext = 0
        self.vmax = 0
        self.smax = 0
        self.nlabel = 0
        self.nops = 0

    def reset_regs(self, v0=1, s0=4):
        self.vnext, self.snext = v0, s0
        self.vmax, self.smax = v0, s0

    def v(self, n=1, align=None):
        al = align or (1 if n == 1 else (2 if n == 2 else 4 if n % 4 == 0 else 2))
        i = (self.vnext + al - 1) // al * al
        self.vnext = i + n
        self.vmax = max(self.vmax, self.vnext)
        assert self.vnext <= 256, "out of vgprs"
        return Reg("v", i, n)

    def s(self, n=1, align=None):
        al = align or (1 if n == 1 else (2 if n == 2 else 4))
        i = (self.snext + al - 1) // al * al
        self.snext = i + n
        self.smax = max(self.smax, self.snext)
        assert self.snext <= 100, "out of sgprs"
        return Reg("s", i, n)

    def mark(self):
        return (self.vnext, self.snext)

    def release(self, m):
        self.vnext, self.snext = m

    def raw(self, s):
        self.lines.append(s)

    def comment(self, s):
        self.lines.append("    ; " + s)

    def label(self, name):
        self.lines.append(name + ":")

    _uid = [0]

    def newlabel(self, base="L"):
        Asm._uid[0] += 1
        return f"{base}_{Asm._uid[0]}"

    def nop(self, states):
        while states > 0:
            n = min(states, 16)
            self.lines.append(f"    s_nop {n - 1}")
            self.h.t += n
            self.nops += n
            states -= n

    @staticmethod
    def _keys(op):
        if isinstance(op, Mod):
            op = op.r
        if isinstance(op, Reg):
            return op.keys()
        if isinstance(op, str) and op in ("vcc", "exec", "m0"):
            return [op]
        return []

    def __call__(self, mn, *ops, mod=""):
        h = self.h
        need = 0
        import re as _re
        mo = _re.search(r"offset:(\d+)", mod)
        if mo:
            lim = 65535 if mn.startswith("ds_") else 4095
            assert int(mo.group(1)) <= lim, (mn, mod)

        def req(tprod, n):
            nonlocal need
            need = max(need, tprod + n + 1)

        K = self._keys
        isv = lambda k: isinstance(k, tuple) and k[0] in ("v", "a")
        iss = lambda k: (isinstance(k, tuple) and k[0] == "s") or k == "vcc"
        vreads, vwrites, sreads_valu, swrites_valu = [], [], [], []
        kind = None
        is_dpp = ("quad_perm" in mod) or ("row_" in mod) or ("wave_" in mod)
        if mn.startswith("v_mfma"):
            kind = "mfma"
        elif mn.startswith("v_"):
            kind = "valu"
        elif mn.startswith("ds_"):
            kind = "ds"
        elif mn.startswith("buffer_") or mn.startswith("global_") or mn.startswith("flat_"):
            kind = "vmem"
        else:
            kind = "salu"

        def mfma_d_hazard_for_rw(key):
            e = h.mw.get(key)
            if e:
                t, cls, p, _ = e
                req(t, (XDL_RW if cls == "xdl" else SG_RW)[p])

        if kind == "valu":
            if mn.startswith("v_cmp"):
                dst = K(ops[0]); srcs = [k for o in ops[1:] for k in K(o)]
                swrites_valu = dst
                assert not mn.startswith("v_cmpx")
            elif mn in ("v_readfirstlane_b32", "v_readlane_b32"):
                swrites_valu = K(ops[0])
                srcs = K(ops[1])
                for k in srcs:
                    if k in h.vw:
                        req(h.vw[k][0], 1)
                if mn == "v_readlane_b32":
                    for k in K(ops[2]):
                        if k in h.sw:
                            req(h.sw[k], 4)
            elif mn.startswith("v_permlane"):
                vwrites = K(ops[0]) + K(ops[1])
                srcs = list(vwrites)
                for k in srcs:
                    if k in h.vw:
                        req(h.vw[k][0], 2)
            elif "_co_" in mn:
                vwrites = K(ops[0]); swrites_valu = K(ops[1])
                srcs = [k for o in ops[2:] for k in K(o)]
            else:
                vwrites = K(ops[0])
                srcs = [k for o in ops[1:] for k in K(o)]
                if mn.startswith("v_fmac") or mn.startswith("v_dot2c") or mn.startswith("v_pk_fmac") or is_dpp:
                    srcs = srcs + vwrites
            if is_dpp:
                for k in K(ops[1]):
                    if k in h.vw:
                        req(h.vw[k][0], 2)
                if h.ex is not None:
                    req(h.ex, 5)
            istrans = mn in TRANS
            for k in srcs:
                if isv(k):
                    mfma_d_hazard_for_rw(k)
                    e = h.vw.get(k)
                    if e and e[1] and not istrans:
                        req(e[0], 1)
                elif iss(k):
                    if k in h.sw:
                        req(h.sw[k], 2)
            for k in vwrites:
                mfma_d_hazard_for_rw(k)
                if k in h.mc:
                    req(h.mc[k][0], XDL_C_WAR[h.mc[k][1]])
                if k in h.st:
                    req(h.st[k], 2)
        elif kind == "mfma":
            cls, p = mfma_info(mn)
            d = ops[0]
            for o in ops[1:3]:
                for k in K(o):
                    if k in h.vw:
                        req(h.vw[k][0], 2)
                    mfma_d_hazard_for_rw(k)
            c = ops[3]
            if isinstance(c, Reg):
                for k in c.keys():
                    if k in h.vw:
                        req(h.vw[k][0], 2)
                    e = h.mw.get(k)
                    if e:
                        t, pcls, pp, rg = e
                        same = rg == (c.k, c.i, c.n) and pcls == cls and pp == p
                        if pcls == "xdl":
                            if cls == "xdl":
                                req(t, (XDL_C_SAME if same else XDL_C_OVL)[pp])
                            else:
                                req(t, XDL_SG_C[pp])
                        else:
                            if cls == "sg":
                                req(t, (SG_C_SAME if same else SG_C_OVL)[pp])
            for k in d.keys():
                e = h.mw.get(k)
                if e and not (isinstance(c, Reg) and (c.k, c.i, c.n) == (d.k, d.i, d.n)):
                    t, pcls, pp, rg = e
                    req(t, (XDL_C_OVL if pcls == "xdl" else SG_C_OVL)[pp])
                if k in h.st:
                    req(h.st[k], 2)
            if h.ex is not None:
                req(h.ex, 4)
        elif kind in ("ds", "vmem"):
            reads, writes = [], []
            sregs = []
            lds_dma = kind == "vmem" and (" lds" in (" " + mod) or "load_lds" in mn)
            if kind == "ds":
                if mn.startswith("ds_read") or "permute" in mn or "swizzle" in mn:
                    writes = K(ops[0]); reads = [k for o in ops[1:] for k in K(o)]
                else:
                    reads = [k for o in ops for k in K(o)]
            else:
                if mn.startswith("buffer_load") and not lds_dma:
                    writes = K(ops[0]); rest = ops[1:]
                elif mn.startswith("global_load") and not lds_dma:
                    writes = K(ops[0]); rest = ops[1:]
                else:
                    rest = ops
                allk = [k for o in rest for k in K(o)]
                reads = [k for k in allk if isv(k)]
                sregs = [k for k in allk if iss(k)]
                if lds_dma and h.m0 is not None:
                    req(h.m0, 1)
            for k in reads:
                if isv(k):
                    mfma_d_hazard_for_rw(k)
            for k in writes:
                mfma_d_hazard_for_rw(k)
                if k in h.st:
                    req(h.st[k], 1)
            for k in sregs:
                if k in h.sw:
                    req(h.sw[k], 5)
        if kind in ("valu", "mfma", "ds", "vmem"):
            for idx_, o in enumerate(ops):
                for kk in K(o):
                    e = h.dl.get(kk)
                    if e:
                        if mn == e[1] and idx_ == 3:
                            continue
                        req(e[0], 3)
        if need > h.t:
            self.nop(need - h.t)
        t = h.t
        if kind == "valu":
            istrans = mn in TRANS
            for k in vwrites:
                h.vw[k] = (t, istrans)
                h.mw.pop(k, None)
                if mn.startswith("v_dot"):
                    h.dl[k] = (t, mn)
                else:
                    h.dl.pop(k, None)
            for k in swrites_valu:
                if k == "exec":
                    h.ex = t
                else:
                    h.sw[k] = t
        elif kind == "mfma":
            cls, p = mfma_info(mn)
            d = ops[0]
            for k in d.keys():
                h.mw[k] = (t, cls, p, (d.k, d.i, d.n))
                h.vw.pop(k, None)
            if cls == "xdl" and isinstance(ops[3], Reg):
                for k in ops[3].keys():
                    h.mc[k] = (t, p)
        elif kind in ("ds", "vmem"):
            if kind == "vmem" and ("store_dwordx4" in mn or "store_dwordx3" in mn):
                data = ops[0] if mn.startswith("buffer") else ops[1]
                for k in K(data):
                    h.st[k] = t
            if (kind == "ds" and mn.startswith("ds_read")) or (kind == "vmem" and "load" in mn and not lds_dma):
                for k in K(ops[0]):
                    h.vw.pop(k, None)
                    h.mw.pop(k, None)
        else:
            if ops and isinstance(ops[0], str) and ops[0] == "m0":
                h.m0 = t
            elif ops:
                for k in K(ops[0]):
                    h.sw.pop(k, None)
        h.t = t + 1
        txt = "    " + mn
        if ops:
            txt += " " + ", ".join(str(o) for o in ops)
        if mod:
            txt += " " + mod
        self.lines.append(txt)

    def clear(self):
        h = self.h
        need = 0
        for k, (t, tr) in h.vw.items():
            need = max(need, t + 2 + 1)
        for k, (t, cls, p, _) in h.mw.items():
            need = max(need, t + (XDL_RW if cls == "xdl" else SG_RW)[p] + 1)
        for k, (t, p) in h.mc.items():
            need = max(need, t + XDL_C_WAR[p] + 1)
        for k, t in h.sw.items():
            need = max(need, t + 5 + 1)
        for k, t in h.st.items():
            need = max(need, t + 2 + 1)
        for k, e in h.dl.items():
            need = max(need, e[0] + 3 + 1)
        if h.m0 is not None:
            need = max(need, h.m0 + 2)
        if h.ex is not None:
            need = max(need, h.ex + 6)
        if need > h.t:
            self.nop(need - h.t)

    def loop(self, body):
        st0 = copy.deepcopy(self.h)
        saved = self.lines
        m = (self.vnext, self.snext, self.nlabel, self.nops)
        self.lines = []
        body()
        st1 = self.h
        shift = st1.t - st0.t
        mg = copy.deepcopy(st0)
        for name in ("vw", "mw", "mc", "sw", "st", "dl"):
            d0 = getattr(mg, name)
            for k, e in getattr(st1, name).items():
                if isinstance(e, tuple):
                    e2 = (e[0] - shift,) + tuple(e[1:])
                    if k not in d0 or d0[k][0] < e2[0]:
                        d0[k] = e2
                else:
                    e2 = e - shift
                    if k not in d0 or d0[k] < e2:
                        d0[k] = e2
        for name in ("m0", "ex"):
            e = getattr(st1, name)
            if e is not None:
                e2 = e - shift
                o = getattr(mg, name)
                if o is None or o < e2:
                    setattr(mg, name, e2)
        self.h = mg
        self.lines = saved
        self.vnext, self.snext, self.nlabel, self.nops = m
        body()

    def stamp_init(self, n=12):
        self.stamps = [self.s(2) for _ in range(n)]
        self.nstamp = 0

    def stamp(self, wait=True):
        if not getattr(self, "stamps", None):
            return
        self("s_memtime", self.stamps[self.nstamp])
        self.nstamp += 1

    def stamp_real(self):
        if not getattr(self, "stamps", None):
            return
        self("s_memrealtime", self.stamps[self.nstamp])
        self.nstamp += 1

    def stamp_dump(self, dbgptr, wg):
        if not getattr(self, "stamps", None):
            return
        lab = self.newlabel("NOST")
        self.waitcnt(lgkm=0)
        self("s_cmp_lg_u32", "s2", str(wg))
        self("s_cbranch_scc1", lab)
        sd = self.s(4)
        self.srd(sd, dbgptr, 256)
        vt = self.v(); vo = self.v()
        self("v_lshlrev_b32", vo, 6, "v0")
        self("v_lshlrev_b32", vo, 4, vo)
        for j in range(self.nstamp):
            self("v_mov_b32", vt, self.stamps[j][0])
            self("buffer_store_dword", vt, vo, sd, 0, mod=f"offen offset:{4 * j}")
        self.label(lab)

    def waitcnt(self, vm=None, lgkm=None):
        parts = []
        if vm is not None:
            parts.append(f"vmcnt({vm})")
        if lgkm is not None:
            parts.append(f"lgkmcnt({lgkm})")
        self.lines.append("    s_waitcnt " + " ".join(parts))
        self.h.t += 1

    def srd(self, dst, base, nbytes):
        self("s_mov_b32", dst[0], base[0])
        self("s_and_b32", dst[1], base[1], "0xffff")
        self("s_mov_b32", dst[2], str(nbytes))
        self("s_mov_b32", dst[3], "0x00020000")

    def text(self):
        return "\n".join(self.lines) + "\n"


def kernel_header(name):
    return (f".globl {name}\n.p2align 8\n.type {name},@function\n{name}:\n")


def kernel_desc(name, vgpr, sgpr, accum=None):
    vg = max(vgpr, 8)
    acc = accum if accum is not None else (vg + 3) // 4 * 4
    return (f".p2align 6\n.amdhsa_kernel {name}\n"
            f"  .amdhsa_next_free_vgpr {vg}\n"
            f"  .amdhsa_next_free_sgpr {max(sgpr, 16)}\n"
            f"  .amdhsa_accum_offset {acc}\n"
            f"  .amdhsa_group_segment_fixed_size 0\n"
            f"  .amdhsa_kernarg_size 112\n"
            f"  .amdhsa_user_sgpr_count 2\n"
            f"  .amdhsa_user_sgpr_kernarg_segment_ptr 1\n"
            f"  .amdhsa_system_sgpr_workgroup_id_x 1\n"
            f"  .amdhsa_float_denorm_mode_32 3\n"
            f".end_amdhsa_kernel\n")
```

```python
from asmgen import *
from k1 import *

K1B_LDS = 8 * LN_PITCH + 16384


def gen_k1b(hilo=True, stamps=False):
    k = Asm()
    k.reset_regs(v0=1, s0=4)
    name = "k1_kernel"
    if stamps:
        k.stamp_init(6)
    k.stamp()
    k("s_cmp_ge_u32", "s2", "256")
    k("s_cbranch_scc1", "K1_END")
    ptr = load_kernargs(k)
    lane = k.v(); wv = k.v(); swave = k.s()
    k("v_and_b32", lane, 63, "v0")
    k("v_lshrrev_b32", wv, 6, "v0")
    k("v_readfirstlane_b32", swave, wv)
    i16 = k.v(); q = k.v()
    k("v_and_b32", i16, 15, lane)
    k("v_lshrrev_b32", q, 4, lane)
    voff = k.v()
    k("v_lshlrev_b32", voff, 4, lane)
    k.waitcnt(lgkm=0)
    st = k.s()
    sx = k.s(4)
    k.srd(sx, ptr["u"], L * D * 2)
    srow = k.s()
    k("s_lshl_b32", srow, "s2", 13)
    k("s_lshl_b32", st, swave, 11)
    k("s_add_u32", srow, srow, st)
    X = [k.v(4) for _ in range(2)]
    for r in range(2):
        k("buffer_load_dwordx4", X[r], voff, sx, srow, mod=f"offen offset:{r * 1024}")
    sd = k.s(); shw = k.s()
    k("s_lshl_b32", sd, "s2", 1)
    k("s_lshr_b32", st, swave, 1)
    k("s_add_u32", sd, sd, st)
    k("s_and_b32", shw, swave, 1)
    soff = k.s()
    k("s_lshl_b32", soff, sd, 8)
    k("s_lshl_b32", st, shw, 7)
    k("s_add_u32", soff, soff, st)
    v2 = k.v()
    k("v_lshlrev_b32", v2, 1, lane)
    PAR = {}
    stmp = k.s(4)
    for nm in ("lar", "ai", "cr", "ci"):
        k.srd(stmp, ptr[nm], D * N * 2)
        PAR[nm] = k.v()
        k("buffer_load_ushort", PAR[nm], v2, stmp, soff, mod="offen")
    vz = k.v()
    k("v_mov_b32", vz, 0)
    ldt = k.v()
    k.srd(stmp, ptr["ldt"], D * 2)
    k("s_lshl_b32", st, sd, 1)
    k("buffer_load_ushort", ldt, vz, stmp, st, mod="offen")
    m0 = k.mark()
    sxn = ws_srd(k, ptr, WS_XN, L * D * 2)
    sxt = ws_srd(k, ptr, WS_XNT, D * XT_PITCH)
    sones = k.s(); smask = k.s()
    k("s_mov_b32", sones, "0x3f803f80")
    k("s_mov_b32", smask, "0xffff0000")
    S = [k.v() for _ in range(2)]; T = [k.v() for _ in range(2)]
    for r in range(2):
        k.waitcnt(vm=6 - r)
        k("v_dot2_f32_bf16", S[r], X[r][0], sones, 0)
        for j in range(1, 4):
            k("v_dot2_f32_bf16", S[r], X[r][j], sones, S[r])
    reduce64_sum(k, S, T)
    mean = S
    for r in range(2):
        k("v_mul_f32", mean[r], fl(1.0 / 512), S[r])
    Fv = [k.v(8) for _ in range(2)]
    SS = [k.v() for _ in range(2)]
    T2 = [k.v() for _ in range(2)]
    for r in range(2):
        for j in range(4):
            k("v_lshlrev_b32", Fv[r][2 * j], 16, X[r][j])
            k("v_and_b32", Fv[r][2 * j + 1], smask, X[r][j])
    for j in range(0, 8, 2):
        for r in range(2):
            k("v_sub_f32", T[r], Fv[r][j], mean[r])
            k("v_sub_f32", T2[r], Fv[r][j + 1], mean[r])
        for r in range(2):
            if j == 0:
                k("v_mul_f32", SS[r], T[r], T[r])
            else:
                k("v_fma_f32", SS[r], T[r], T[r], SS[r])
        for r in range(2):
            k("v_fma_f32", SS[r], T2[r], T2[r], SS[r])
    reduce64_sum(k, SS, T)
    den = SS
    rc = [k.v() for _ in range(2)]
    for r in range(2):
        k("v_mul_f32", den[r], fl(1.0 / 512), SS[r])
    for r in range(2):
        bf16r(k, den[r], den[r])
    for r in range(2):
        k("v_add_f32", den[r], fl(1e-5), den[r])
    for r in range(2):
        bf16r(k, den[r], den[r])
    for r in range(2):
        k("v_sqrt_f32", den[r], den[r])
    for r in range(2):
        bf16r(k, den[r], den[r])
    for r in range(2):
        k("v_rcp_f32", rc[r], den[r])
    for r in range(2):
        bf16r(k, mean[r], mean[r])
    vlds = k.v()
    k("v_mul_u32_u24", vlds, LN_PITCH * 2, wv)
    k("v_add_u32", vlds, vlds, voff)
    H = k.v(4)
    a0, a1, q0, q1, e0, e1 = [k.v() for _ in range(6)]
    for r in range(2):
        O = X[r]
        for j in range(4):
            k("v_sub_f32", a0, Fv[r][2 * j], mean[r])
            k("v_sub_f32", a1, Fv[r][2 * j + 1], mean[r])
            k("v_cvt_pk_bf16_f32", a1, a0, a1)
            k("v_lshlrev_b32", a0, 16, a1)
            k("v_and_b32", a1, smask, a1)
            k("v_mul_f32", q0, a0, rc[r])
            k("v_mul_f32", q1, a1, rc[r])
            k("v_fma_f32", e0, neg(q0), den[r], a0)
            k("v_fma_f32", e1, neg(q1), den[r], a1)
            k("v_fma_f32", q0, e0, rc[r], q0)
            k("v_fma_f32", q1, e1, rc[r], q1)
            k("v_cvt_pk_bf16_f32", O[j], q0, q1)
            k("v_lshlrev_b32", q0, 16, O[j])
            k("v_and_b32", q1, smask, O[j])
            k("v_cvt_pkrtz_f16_f32", H[j], q0, q1)
        k("buffer_store_dwordx4", O, voff, sxn, srow, mod=f"offen offset:{r * 1024}")
        k("ds_write_b128", vlds, H, mod=f"offset:{r * LN_PITCH}")
    k.waitcnt(lgkm=0)
    k("s_barrier")
    vrd = k.v(); vst = k.v(); t0 = k.v(); t1 = k.v()
    k("v_lshrrev_b32", t0, 2, i16)
    k("v_mul_u32_u24", vrd, LN_PITCH, t0)
    k("v_and_b32", t0, 3, i16)
    k("v_lshl_add_u32", vrd, t0, 3, vrd)
    k("v_lshl_add_u32", t1, wv, 3, q)
    k("v_lshl_add_u32", vrd, t1, 5, vrd)
    k("v_lshl_add_u32", vst, t1, 4, i16)
    k("v_mul_u32_u24", vst, XT_PITCH, vst)
    sl0 = k.s()
    k("s_lshl_b32", sl0, "s2", 4)
    k("s_add_u32", sl0, sl0, 64)
    sl1 = k.s()
    k("s_add_u32", sl1, sl0, 64 * XT_PITCH)
    TT = [k.v(4) for _ in range(2)]
    for it in range(2):
        k("ds_read_b64_tr_b16", TT[it][0:2], vrd, mod=f"offset:{it * 128}")
        k("ds_read_b64_tr_b16", TT[it][2:4], vrd, mod=f"offset:{it * 128 + 4 * LN_PITCH}")
    zz = k.v(4)
    for j in range(4):
        k("v_mov_b32", zz[j], 0)
    vzp = k.v()
    k("v_lshrrev_b32", vzp, 2, "v0")
    k("v_mul_u32_u24", vzp, XT_PITCH, vzp)
    k("v_and_b32", t0, 3, "v0")
    k("v_lshl_add_u32", vzp, t0, 4, vzp)
    szp = k.s()
    k("s_mul_i32", szp, "s2", 2 * XT_PITCH)
    sex = k.s(2)
    k("v_cmp_gt_u32", "vcc", 8, "v0")
    k("s_and_saveexec_b64", sex, "vcc")
    k("s_cbranch_execz", "K1_NOZ")
    k("buffer_store_dwordx4", zz, vzp, sxt, szp, mod="offen")
    k.label("K1_NOZ")
    k("s_mov_b64", "exec", sex)
    k.waitcnt(lgkm=0)
    k("buffer_store_dwordx4", TT[0], vst, sxt, sl0, mod="offen")
    k("buffer_store_dwordx4", TT[1], vst, sxt, sl1, mod="offen")
    k.clear()
    k.release(m0)
    k.stamp()
    sc = {}
    for nm, val in (("l2e_hi", L2E_HI), ("l2e_lo", L2E_LO), ("ln2", LN2), ("i2p_hi", I2P_HI), ("i2p_lo", I2P_LO)):
        sc[nm] = k.s()
        k("s_mov_b32", sc[nm], fl(val))
    skh = ws_srd(k, ptr, WS_KH, D * L * 2)
    skl = ws_srd(k, ptr, WS_KL, D * L * 2)
    ski = ws_srd(k, ptr, WS_KINV, D * 4)
    pF = k.v()
    k("v_lshlrev_b32", pF, 3, i16)
    k("v_cvt_f32_u32", pF, pF)
    pR0 = k.v(); pR2 = k.v()
    t0, t1, t2 = k.v(), k.v(), k.v()
    k("v_lshlrev_b32", t0, 1, i16)
    k("v_add_u32", t0, 240, t0)
    k("v_and_b32", t1, 1, i16)
    k("v_lshlrev_b32", t1, 2, t1)
    k("v_bfe_u32", t2, i16, 1, 1)
    k("v_lshl_add_u32", t1, t2, 8, t1)
    k("v_add_u32", t1, 512, t1)
    k("v_cmp_gt_u32", "vcc", 8, i16)
    k("v_cndmask_b32", pR0, t0, i16, "vcc")
    k("v_cmp_gt_u32", "vcc", 12, i16)
    k("v_cndmask_b32", pR0, t1, pR0, "vcc")
    k("v_lshlrev_b32", pR2, 7, i16)
    k("v_add_u32", pR2, 1024, pR2)
    k("v_cvt_f32_u32", pR0, pR0)
    k("v_cvt_f32_u32", pR2, pR2)
    dt = k.v(); ndl = k.v(); dt2 = k.v()
    k.waitcnt(vm=4)
    k("v_lshlrev_b32", ldt, 16, ldt)
    exp_precise(k, dt, ldt, t0, t1, sc)
    bf16r(k, dt, dt)
    k("v_mul_f32", ndl, sc["l2e_hi"], dt)
    k("v_sub_f32", ndl, 0, ndl)
    k("v_add_f32", dt2, dt, dt)
    for nm in ("lar", "ai", "cr", "ci"):
        k("v_lshlrev_b32", PAR[nm], 16, PAR[nm])
    LP = dict(ar2=k.v(), whi=k.v(), wlo=k.v(), cr=PAR["cr"], ci=PAR["ci"], gr=k.v(), gi=k.v())
    exp_precise(k, LP["ar2"], PAR["lar"], t0, t1, sc)
    bf16r(k, LP["ar2"], LP["ar2"])
    k("v_mul_f32", LP["ar2"], LP["ar2"], ndl)
    ai = PAR["ai"]
    k("v_mul_f32", ai, ai, dt)
    k("v_mul_f32", LP["whi"], sc["i2p_hi"], ai)
    k("v_fma_f32", LP["wlo"], ai, sc["i2p_hi"], neg(LP["whi"]))
    k("v_fma_f32", LP["wlo"], ai, sc["i2p_lo"], LP["wlo"])
    k("v_mul_f32", LP["cr"], LP["cr"], dt2)
    k("v_mul_f32", LP["ci"], LP["ci"], dt2)
    s128 = k.s()
    k("s_mov_b32", s128, fl(128.0))
    k("v_mul_f32", t0, s128, LP["ar2"])
    k("v_exp_f32", t0, t0)
    k("v_mul_f32", t1, s128, LP["whi"])
    k("v_fract_f32", t1, t1)
    k("v_fma_f32", t1, LP["wlo"], s128, t1)
    k("v_sin_f32", LP["gi"], t1)
    k("v_cos_f32", LP["gr"], t1)
    k("v_mul_f32", LP["gi"], LP["gi"], t0)
    k("v_mul_f32", LP["gr"], LP["gr"], t0)
    Dacc = [k.v(4) for _ in range(3)]
    B1, B2 = k.v(), k.v()
    mag = [k.v() for _ in range(3)]; rv = [k.v() for _ in range(3)]; tt = [k.v() for _ in range(3)]
    Er = [k.v() for _ in range(4)]; Ei = [k.v() for _ in range(4)]
    PS = [pR0, pR2, pF]
    names = ("ar2", "whi", "wlo", "cr", "ci", "gr", "gi")
    PRM = [{nm: k.v() for nm in names} for _ in range(2)]

    def bcast(s):
        for nm in names:
            k("v_mov_b32_dpp", PRM[s & 1][nm], LP[nm], mod=f"row_newbcast:{s} row_mask:0xf bank_mask:0xf")
    bcast(0)
    for s in range(16):
        P = PRM[s & 1]
        for j in range(3):
            k("v_mul_f32", mag[j], P["ar2"], PS[j])
        for j in range(3):
            k("v_mul_f32", rv[j], P["whi"], PS[j])
        for j in range(3):
            k("v_exp_f32", mag[j], mag[j])
        for j in range(3):
            k("v_fma_f32", tt[j], P["whi"], PS[j], neg(rv[j]))
        for j in range(3):
            k("v_fma_f32", tt[j], P["wlo"], PS[j], tt[j])
        for j in range(3):
            k("v_fract_f32", rv[j], rv[j])
        for j in range(3):
            k("v_add_f32", rv[j], rv[j], tt[j])
        for j in range(3):
            k("v_sin_f32", Ei[j], rv[j])
        for j in range(3):
            k("v_cos_f32", Er[j], rv[j])
        if s < 15:
            bcast(s + 1)
        for j in (2, 0, 1):
            k("v_mul_f32", Ei[j], mag[j], Ei[j])
            k("v_mul_f32", Er[j], mag[j], Er[j])
        k("v_mul_f32", B1, P["ci"], Ei[2])
        k("v_mul_f32", B2, P["cr"], Ei[2])
        k("v_mul_f32", Er[3], P["gi"], Ei[0])
        k("v_mul_f32", Ei[3], P["gr"], Ei[0])
        k("v_fma_f32", B1, P["cr"], Er[2], neg(B1))
        k("v_fma_f32", B2, neg(P["ci"]), Er[2], neg(B2))
        k("v_fma_f32", Er[3], P["gr"], Er[0], neg(Er[3]))
        k("v_fma_f32", Ei[3], P["gi"], Er[0], Ei[3])
        for r, j in ((0, 0), (1, 3), (2, 1)):
            k("v_mfma_f32_16x16x4_f32", Dacc[r], Er[j], B1, Dacc[r] if s else 0)
        for r, j in ((0, 0), (1, 3), (2, 1)):
            k("v_mfma_f32_16x16x4_f32", Dacc[r], Ei[j], B2, Dacc[r])
    k.stamp()
    LB = 8 * LN_PITCH
    sreg = k.s()
    k("s_lshr_b32", sreg, swave, 1)
    k("s_lshl_b32", sreg, sreg, 13)
    k("s_add_u32", sreg, sreg, LB)
    vb = k.v()
    k("v_mul_u32_u24", vb, 48, lane)
    k("v_add_u32", vb, sreg, vb)
    k("s_cmp_eq_u32", shw, 0)
    k.clear()
    k("s_cbranch_scc1", "K1_KG_A")
    for r in range(3):
        k("ds_write_b128", vb, Dacc[r], mod=f"offset:{16 * r}")
    k.waitcnt(lgkm=0)
    k("s_barrier")
    k("s_branch", "K1_KG_B")
    k.label("K1_KG_A")
    k("s_barrier")
    P2 = [k.v(4) for _ in range(3)]
    for r in range(3):
        k("ds_read_b128", P2[r], vb, mod=f"offset:{16 * r}")
    k.waitcnt(lgkm=0)
    for r in range(3):
        for j in range(4):
            k("v_add_f32", Dacc[r][j], Dacc[r][j], P2[r][j])
    mx = k.v(); mt = k.v()
    k("v_max3_f32", mx, absm(Dacc[0][0]), absm(Dacc[0][1]), absm(Dacc[0][2]))
    vals = [Dacc[r][j] for r in range(3) for j in range(4)][3:]
    for a in range(0, 8, 2):
        k("v_max3_f32", mx, absm(vals[a]), absm(vals[a + 1]), mx)
    k("v_max_f32", mx, absm(vals[8]), mx)
    reduce64_sum(k, [mx], [mt], op="v_max_f32")
    scl = k.v(); inv = k.v()
    k("v_bfe_u32", t0, mx, 23, 8)
    k("v_sub_u32", t1, 268, t0)
    k("v_mov_b32", t2, 240)
    k("v_med3_i32", t1, t1, 14, t2)
    k("v_lshlrev_b32", scl, 23, t1)
    k("v_sub_u32", t1, 254, t1)
    k("v_lshlrev_b32", inv, 23, t1)
    k("s_lshl_b32", st, sd, 2)
    k("buffer_store_dword", inv, vz, ski, st, mod="offen")
    ub = k.v(); uadd = k.v()
    k("v_lshlrev_b32", t0, 2, q)
    k("v_lshl_add_u32", t0, i16, 3, t0)
    k("v_lshlrev_b32", t1, 2, i16)
    k("v_add_u32", t1, 256, t1)
    k("v_mov_b32", t2, 384)
    k("v_lshl_add_u32", t2, i16, 1, t2)
    k("v_cmp_gt_u32", "vcc", 2, q)
    k("v_cndmask_b32", ub, t1, t0, "vcc")
    k("v_mov_b32", uadd, 64)
    k("v_mov_b32", t0, 128)
    k("v_cndmask_b32", uadd, uadd, t0, "vcc")
    k("v_cmp_gt_u32", "vcc", 3, q)
    k("v_cndmask_b32", ub, t2, ub, "vcc")
    k("v_mov_b32", t0, 32)
    k("v_cndmask_b32", uadd, t0, uadd, "vcc")
    jx = k.v()
    k("v_mov_b32", t0, 62)
    k("v_mov_b32", t1, 0)
    k("v_cndmask_b32", jx, t0, t1, "vcc")
    k("v_lshlrev_b32", ub, 2, ub)
    k("v_add_u32", ub, sreg, ub)
    k("v_lshlrev_b32", uadd, 2, uadd)
    k("v_lshlrev_b32", jx, 2, jx)
    a_t0lo = ub
    a_t0hi = k.v(); a_t1lo = k.v(); a_t1hi = k.v(); a_t2 = k.v()
    k("v_add_u32", a_t0hi, ub, jx)
    k("v_add_u32", a_t1lo, ub, uadd)
    k("v_add_u32", a_t1hi, a_t1lo, jx)
    k("v_lshl_add_u32", a_t2, q, 6, i16)
    k("v_lshlrev_b32", a_t2, 2, a_t2)
    k("v_add_u32", a_t2, sreg, a_t2)
    hv = [k.v() for _ in range(4)]; lv = [k.v() for _ in range(4)]; tv = [k.v() for _ in range(4)]
    for r in range(3):
        for j in range(4):
            k("v_mul_f32", tv[j], Dacc[r][j], scl)
        for j in range(4):
            k("v_cvt_f16_f32", hv[j], tv[j])
        for j in range(4):
            k("v_cvt_f32_f16", lv[j], hv[j])
        for j in range(4):
            k("v_sub_f32", lv[j], tv[j], lv[j])
        for j in range(4):
            k("v_cvt_f16_f32", lv[j], lv[j])
        for j in range(4):
            k("v_pack_b32_f16", hv[j], hv[j], lv[j])
        for j in range(4):
            if r < 2:
                addr = ((a_t0lo, a_t0hi), (a_t1lo, a_t1hi))[r][j >> 1]
                off = 4 * j
            else:
                addr = a_t2
                off = 2048 + 64 * j
            k("ds_write_b32", addr, hv[j], mod=f"offset:{3072 + off}")
    k.waitcnt(lgkm=0)
    k.clear()
    k.label("K1_KG_B")
    k("s_barrier")
    vl = k.v()
    k("v_lshlrev_b32", vl, 4, lane)
    k("s_lshl_b32", st, shw, 10)
    k("v_add_u32", vl, st, vl)
    OH = k.v(8); OL = k.v(8)
    RH = k.v(16)
    ua = [k.v() for _ in range(4)]; ut = [k.v() for _ in range(4)]
    sbias = k.s()
    k("s_sub_u32", sbias, sreg, 4 * 17024 - 3072)
    sr3 = k.s()
    k("s_add_u32", sr3, sreg, 3072)
    for e0_ in range(0, 16, 4):
        for j in range(4):
            k("v_add_u32", ut[j], e0_ + j, vl)
        for j in range(4):
            k("v_cvt_f32_u32", ua[j], ut[j])
        for j in range(4):
            k("v_cvt_pk_bf16_f32", ua[j], ua[j], ua[j])
        for j in range(4):
            k("v_and_b32", ua[j], "0xffff", ua[j])
        for j in range(4):
            k("v_lshl_add_u32", ua[j], ua[j], 2, sbias)
            k("v_lshl_add_u32", tv[j], ut[j], 2, sr3)
        for j in range(4):
            k("v_cmp_gt_u32", "vcc", 128, ut[j])
            k("v_cndmask_b32", ua[j], ua[j], tv[j], "vcc")
        for j in range(4):
            e = e0_ + j
            pos = (e >> 3) * 8 + (7 - (e & 7))
            k("ds_read_b32", RH[pos], ua[j])
    k.waitcnt(lgkm=0)
    sperm_lo = k.s(); sperm_hi = k.s()
    k("s_mov_b32", sperm_lo, "0x05040100")
    k("s_mov_b32", sperm_hi, "0x07060302")
    for j in range(8):
        k("v_perm_b32", OH[j], RH[2 * j + 1], RH[2 * j], sperm_lo)
        k("v_perm_b32", OL[j], RH[2 * j + 1], RH[2 * j], sperm_hi)
    vst = k.v()
    k("v_lshlrev_b32", vst, 1, vl)
    k("s_lshl_b32", st, sd, 12)
    k("buffer_store_dwordx4", OH[0:4], vst, skh, st, mod="offen")
    k("buffer_store_dwordx4", OH[4:8], vst, skh, st, mod="offen offset:16")
    k("buffer_store_dwordx4", OL[0:4], vst, skl, st, mod="offen")
    k("buffer_store_dwordx4", OL[4:8], vst, skl, st, mod="offen offset:16")
    k.stamp()
    k.waitcnt(vm=0)
    k.stamp()
    k.stamp_dump(ptr["dbg"], 100)
    k.label("K1_END")
    k("s_endpgm")
    return name, k, dict(grid=256, block=256, lds=K1B_LDS)
```

```python
from asmgen import *
from k1 import *

K1B_LDS = 8 * LN_PITCH


def gen_k1c(hilo=True, stamps=False):
    k = Asm()
    k.reset_regs(v0=1, s0=4)
    name = "k1_kernel"
    if stamps:
        k.stamp_init(6)
    k.stamp()
    k("s_cmp_ge_u32", "s2", "256")
    k("s_cbranch_scc1", "K1_END")
    ptr = load_kernargs(k)
    lane = k.v(); wv = k.v(); swave = k.s()
    k("v_and_b32", lane, 63, "v0")
    k("v_lshrrev_b32", wv, 6, "v0")
    k("v_readfirstlane_b32", swave, wv)
    i16 = k.v(); q = k.v()
    k("v_and_b32", i16, 15, lane)
    k("v_lshrrev_b32", q, 4, lane)
    voff = k.v()
    k("v_lshlrev_b32", voff, 4, lane)
    k.waitcnt(lgkm=0)
    st = k.s()
    sx = k.s(4)
    k.srd(sx, ptr["u"], L * D * 2)
    srow = k.s()
    k("s_lshl_b32", srow, "s2", 13)
    k("s_lshl_b32", st, swave, 11)
    k("s_add_u32", srow, srow, st)
    X = [k.v(4) for _ in range(2)]
    for r in range(2):
        k("buffer_load_dwordx4", X[r], voff, sx, srow, mod=f"offen offset:{r * 1024}")
    sd = k.s(); shw = k.s()
    k("s_lshl_b32", sd, "s2", 1)
    k("s_lshr_b32", st, swave, 1)
    k("s_add_u32", sd, sd, st)
    k("s_and_b32", shw, swave, 1)
    spf = k.s(4)
    k("s_cmp_lt_u32", swave, 2)
    k("s_cselect_b32", spf[0], ptr["wg"][0], ptr["wu"][0])
    k("s_cselect_b32", spf[1], ptr["wg"][1], ptr["wu"][1])
    k("s_and_b32", spf[1], spf[1], "0xffff")
    k("s_mov_b32", spf[2], str(D * F * 2))
    k("s_mov_b32", spf[3], "0x00020000")
    spo = k.s(); sp2 = k.s()
    k("s_and_b32", spo, "s2", 7)
    k("s_lshl_b32", sp2, shw, 3)
    k("s_add_u32", spo, spo, sp2)
    k("s_mul_i32", spo, spo, 224)
    k("s_lshr_b32", sp2, "s2", 3)
    k("s_mul_i32", sp2, sp2, 16 * 3584)
    k("s_add_u32", spo, spo, sp2)
    vpf = k.v(); vpd = k.v(4)
    k("v_min_u32", vpf, 13, i16)
    k("v_lshlrev_b32", vpf, 4, vpf)
    k("v_mul_u32_u24", vpd[0], 3584, q)
    k("v_add_u32", vpf, vpf, vpd[0])
    for j in range(4):
        k("buffer_load_dwordx4", vpd, vpf, spf, spo, mod="offen")
        if j < 3:
            k("s_add_u32", spo, spo, 4 * 3584)
    m0 = k.mark()
    sxn = ws_srd(k, ptr, WS_XN, L * D * 2)
    sxt = ws_srd(k, ptr, WS_XNT, D * XT_PITCH)
    sones = k.s(); smask = k.s()
    k("s_mov_b32", sones, "0x3f803f80")
    k("s_mov_b32", smask, "0xffff0000")
    S = [k.v() for _ in range(2)]; T = [k.v() for _ in range(2)]
    for r in range(2):
        k.waitcnt(vm=5 - r)
        k("v_dot2_f32_bf16", S[r], X[r][0], sones, 0)
        for j in range(1, 4):
            k("v_dot2_f32_bf16", S[r], X[r][j], sones, S[r])
    reduce64_sum(k, S, T)
    mean = S
    for r in range(2):
        k("v_mul_f32", mean[r], fl(1.0 / 512), S[r])
    Fv = [k.v(8) for _ in range(2)]
    SS = [k.v() for _ in range(2)]
    T2 = [k.v() for _ in range(2)]
    for r in range(2):
        for j in range(4):
            k("v_lshlrev_b32", Fv[r][2 * j], 16, X[r][j])
            k("v_and_b32", Fv[r][2 * j + 1], smask, X[r][j])
    for j in range(0, 8, 2):
        for r in range(2):
            k("v_sub_f32", T[r], Fv[r][j], mean[r])
            k("v_sub_f32", T2[r], Fv[r][j + 1], mean[r])
        for r in range(2):
            if j == 0:
                k("v_mul_f32", SS[r], T[r], T[r])
            else:
                k("v_fma_f32", SS[r], T[r], T[r], SS[r])
        for r in range(2):
            k("v_fma_f32", SS[r], T2[r], T2[r], SS[r])
    reduce64_sum(k, SS, T)
    den = SS
    rc = [k.v() for _ in range(2)]
    for r in range(2):
        k("v_mul_f32", den[r], fl(1.0 / 512), SS[r])
    for r in range(2):
        bf16r(k, den[r], den[r])
    for r in range(2):
        k("v_add_f32", den[r], fl(1e-5), den[r])
    for r in range(2):
        bf16r(k, den[r], den[r])
    for r in range(2):
        k("v_sqrt_f32", den[r], den[r])
    for r in range(2):
        bf16r(k, den[r], den[r])
    for r in range(2):
        k("v_rcp_f32", rc[r], den[r])
    for r in range(2):
        bf16r(k, mean[r], mean[r])
    vlds = k.v()
    k("v_mul_u32_u24", vlds, LN_PITCH * 2, wv)
    k("v_add_u32", vlds, vlds, voff)
    H = k.v(4)
    a0, a1, q0, q1, e0, e1 = [k.v() for _ in range(6)]
    for r in range(2):
        O = X[r]
        for j in range(4):
            k("v_sub_f32", a0, Fv[r][2 * j], mean[r])
            k("v_sub_f32", a1, Fv[r][2 * j + 1], mean[r])
            k("v_cvt_pk_bf16_f32", a1, a0, a1)
            k("v_lshlrev_b32", a0, 16, a1)
            k("v_and_b32", a1, smask, a1)
            k("v_mul_f32", q0, a0, rc[r])
            k("v_mul_f32", q1, a1, rc[r])
            k("v_fma_f32", e0, neg(q0), den[r], a0)
            k("v_fma_f32", e1, neg(q1), den[r], a1)
            k("v_fma_f32", q0, e0, rc[r], q0)
            k("v_fma_f32", q1, e1, rc[r], q1)
            k("v_cvt_pk_bf16_f32", O[j], q0, q1)
            k("v_lshlrev_b32", q0, 16, O[j])
            k("v_and_b32", q1, smask, O[j])
            k("v_cvt_pkrtz_f16_f32", H[j], q0, q1)
        k("buffer_store_dwordx4", O, voff, sxn, srow, mod=f"offen offset:{r * 1024}")
        k("ds_write_b128", vlds, H, mod=f"offset:{r * LN_PITCH}")
    k.waitcnt(lgkm=0)
    k("s_barrier")
    vrd = k.v(); vst = k.v(); t0 = k.v(); t1 = k.v()
    k("v_lshrrev_b32", t0, 2, i16)
    k("v_mul_u32_u24", vrd, LN_PITCH, t0)
    k("v_and_b32", t0, 3, i16)
    k("v_lshl_add_u32", vrd, t0, 3, vrd)
    k("v_lshl_add_u32", t1, wv, 3, q)
    k("v_lshl_add_u32", vrd, t1, 5, vrd)
    k("v_lshl_add_u32", vst, t1, 4, i16)
    k("v_mul_u32_u24", vst, XT_PITCH, vst)
    sl0 = k.s()
    k("s_lshl_b32", sl0, "s2", 4)
    k("s_add_u32", sl0, sl0, 64)
    sl1 = k.s()
    k("s_add_u32", sl1, sl0, 64 * XT_PITCH)
    TT = [k.v(4) for _ in range(2)]
    for it in range(2):
        k("ds_read_b64_tr_b16", TT[it][0:2], vrd, mod=f"offset:{it * 128}")
        k("ds_read_b64_tr_b16", TT[it][2:4], vrd, mod=f"offset:{it * 128 + 4 * LN_PITCH}")
    zz = k.v(4)
    for j in range(4):
        k("v_mov_b32", zz[j], 0)
    vzp = k.v()
    k("v_lshrrev_b32", vzp, 2, "v0")
    k("v_mul_u32_u24", vzp, XT_PITCH, vzp)
    k("v_and_b32", t0, 3, "v0")
    k("v_lshl_add_u32", vzp, t0, 4, vzp)
    szp = k.s()
    k("s_mul_i32", szp, "s2", 2 * XT_PITCH)
    sex = k.s(2)
    k("v_cmp_gt_u32", "vcc", 8, "v0")
    k("s_and_saveexec_b64", sex, "vcc")
    k("s_cbranch_execz", "K1_NOZ")
    k("buffer_store_dwordx4", zz, vzp, sxt, szp, mod="offen")
    k.label("K1_NOZ")
    k("s_mov_b64", "exec", sex)
    k.waitcnt(lgkm=0)
    k("buffer_store_dwordx4", TT[0], vst, sxt, sl0, mod="offen")
    k("buffer_store_dwordx4", TT[1], vst, sxt, sl1, mod="offen")
    k.clear()
    k.release(m0)
    k.stamp()
    k.stamp()
    k.waitcnt(vm=0)
    k.stamp()
    k.stamp_dump(ptr["dbg"], 100)
    k.label("K1_END")
    k("s_endpgm")
    return name, k, dict(grid=256, block=256, lds=K1B_LDS)
```

```python
import math, os
from asmgen import *
from k1 import *

G1_STAGE = 45056
G1_XOFF = 28672
G1_NB = 3
G1_LDS = G1_STAGE * G1_NB
GK1 = -2.0 * math.log2(math.e) * math.sqrt(2.0 / math.pi)
GK2 = GK1 * 0.044715


def gemm1_body(k, ptr, swg, lane, wv, swave, cnt_addr=None):
    sxn = ws_srd(k, ptr, WS_XN, L * D * 2)
    sh = ws_srd(k, ptr, WS_H, L * F * 2)
    smat = k.s(); sw1 = k.s(); st = k.s()
    k("s_lshr_b32", smat, swave, 1)
    k("s_and_b32", sw1, swave, 1)
    sW = k.s(4)
    k("s_cmp_eq_u32", smat, 0)
    k("s_cselect_b32", sW[0], ptr["wg"][0], ptr["wu"][0])
    k("s_cselect_b32", sW[1], ptr["wg"][1], ptr["wu"][1])
    k("s_and_b32", sW[1], sW[1], "0xffff")
    k("s_mov_b32", sW[2], str(D * F * 2))
    k("s_mov_b32", sW[3], "0x00020000")
    smt = k.s(); snt = k.s()
    k("s_lshr_b32", smt, swg, 4)
    k("s_and_b32", snt, swg, 15)
    sn0b = k.s()
    k("s_mul_i32", sn0b, snt, 224)
    i16 = k.v(); kg = k.v()
    k("v_and_b32", i16, 15, lane)
    k("v_lshrrev_b32", kg, 4, lane)
    vd = [k.v() for _ in range(7)]
    t0, t1, t2 = k.v(), k.v(), k.v()
    t3 = k.v(); smag = k.s()
    k("s_mov_b32", smag, 4682)
    for j in range(7):
        k("v_add_u32", t0, 64 * j, lane)
        k("v_mul_lo_u32", t1, t0, smag)
        k("v_lshrrev_b32", t1, 16, t1)
        k("v_mul_u32_u24", t2, 14, t1)
        k("v_sub_u32", t0, t0, t2)
        k("v_lshrrev_b32", t2, 1, t0)
        k("v_bfe_u32", t3, t1, 3, 1)
        k("v_mul_u32_u24", t3, 3, t3)
        k("v_add_u32", t2, t2, t3)
        k("v_subrev_u32", t3, 7, t2)
        k("v_cmp_le_u32", "vcc", 7, t2)
        k("v_cndmask_b32", t2, t2, t3, "vcc")
        k("v_and_b32", t0, 1, t0)
        k("v_lshlrev_b32", t0, 4, t0)
        k("v_lshl_add_u32", t0, t2, 5, t0)
        k("v_mul_u32_u24", t1, 3584, t1)
        k("v_add_u32", vd[j], t0, t1)
    sgo = k.s()
    k("s_mul_i32", sgo, sw1, 32 * 3584)
    k("s_add_u32", sgo, sgo, sn0b)
    slo = k.s()
    k("s_mul_i32", slo, swave, 7168)
    sso = k.s(); ssx = k.s()

    vdx = k.v()
    k("v_lshrrev_b32", t0, 3, lane)
    k("v_and_b32", t1, 7, lane)
    k("v_xor_b32", t1, t1, t0)
    k("v_lshlrev_b32", t1, 4, t1)
    k("v_lshl_add_u32", vdx, t0, 10, t1)
    srow = k.s()
    k("s_lshl_b32", srow, smt, 7)
    k("s_lshl_b32", st, swave, 5)
    k("s_add_u32", srow, srow, st)
    sxg = k.s()
    k("s_lshl_b32", sxg, srow, 10)
    sxl = k.s()
    k("s_lshl_b32", sxl, swave, 12)
    k("s_add_u32", sxl, sxl, G1_XOFF)

    def dma_list(stage):
        buf = stage % G1_NB
        out = []
        for j in range(7):
            def f(j=j):
                if j == 0:
                    k("s_add_u32", sso, sgo, str(stage * 64 * 3584))
                k("s_add_u32", "m0", slo, str(buf * G1_STAGE + j * 1024))
                k("buffer_load_dwordx4", vd[j], sW, sso, mod="offen lds")
            out.append(f)
        for jj in range(4):
            def g(jj=jj):
                k("s_add_u32", ssx, sxg, str(stage * 128 + jj * 8192))
                k("s_add_u32", "m0", sxl, str(buf * G1_STAGE + jj * 1024))
                k("buffer_load_dwordx4", vdx, sxn, ssx, mod="offen lds")
            out.insert(2 * jj + 1, g)
        return out

    def dma(stage):
        for f in dma_list(stage):
            f()

    dma(0)
    dma(1)
    vxr = [k.v(), k.v()]
    k("v_and_b32", t1, 7, i16)
    k("v_xor_b32", t1, t1, kg)
    k("v_lshlrev_b32", t0, 7, i16)
    k("v_add_u32", t0, sxl, t0)
    k("v_lshl_add_u32", vxr[0], t1, 4, t0)
    k("v_xor_b32", t1, 4, t1)
    k("v_lshl_add_u32", vxr[1], t1, 4, t0)
    vxr2 = [k.v(), k.v()]
    k("v_add_u32", vxr2[0], 65536, vxr[0])
    k("v_add_u32", vxr2[1], 65536, vxr[1])
    k("v_add_u32", t0, srow, i16)
    vh = [k.v(), k.v()]
    k("v_mul_u32_u24", t1, 3584, t0)
    k("v_lshl_add_u32", t1, kg, 3, t1)
    k("v_add_u32", vh[0], sn0b, t1)
    k("v_add_u32", vh[1], 16 * 3584, vh[0])
    va = [k.v() for _ in range(7)]
    rr = k.v()
    k("v_lshrrev_b32", rr, 2, i16)
    k("v_lshl_add_u32", t0, kg, 3, rr)
    k("v_mul_u32_u24", t0, 224, t0)
    k("v_and_b32", t1, 3, i16)
    k("v_lshl_add_u32", t0, t1, 3, t0)
    k("v_and_b32", t1, 1, kg)
    k("v_cmp_eq_u32", "vcc", 1, t1)
    for t in range(7):
        k("v_mov_b32", t1, t * 32)
        k("v_mov_b32", t2, ((t + 4) % 7) * 32)
        k("v_cndmask_b32", t1, t1, t2, "vcc")
        k("v_add_u32", va[t], t0, t1)
    vb = [k.v() for _ in range(7)]
    for t in range(7):
        k("v_add_u32", vb[t], 65536, va[t])
    ACC = [[[k.v(4) for _ in range(2)] for _ in range(7)] for _ in range(2)]
    if cnt_addr is not None:
        vcnt = k.v(); vone = k.v(); vcv = k.v(); scv = k.s()
        k("v_mov_b32", vcnt, cnt_addr)
        k("v_mov_b32", vone, 1)
        k("v_mov_b32", vcv, 0)
        k("ds_write_b32", vcnt, vcv)
        k.waitcnt(lgkm=0)
    R = 6
    WF = [k.v(4) for _ in range(R)]
    XF = [[k.v(4) for _ in range(2)] for _ in range(2)]
    items = [(ks, mat, t) for ks in range(2) for t in range(7) for mat in range(2)]
    for s in range(8):
        buf = s % G1_NB
        k.waitcnt(vm=11 if s < 7 else 0)
        if cnt_addr is None:
            k("s_barrier")
        else:
            if s == 0:
                k("s_barrier")
            else:
                k("s_mov_b64", "exec", 1)
                k("ds_add_u32", vcnt, vone)
                k("s_mov_b64", "exec", -1)
                lab = k.newlabel("GSPIN")
                k.clear()
                k.label(lab)
                k("ds_read_b32", vcv, vcnt)
                k.waitcnt(lgkm=0)
                k("v_readfirstlane_b32", scv, vcv)
                k("s_cmp_lt_u32", scv, 4 * s)
                k("s_cbranch_scc1", lab)
        if s in (0, 1, 4):
            k.stamp()
        pend = dma_list(s + 2) if s + 2 < 8 else []
        base = buf * G1_STAGE
        for ks in range(2):
            for mt in range(2):
                if base + mt * 2048 <= 65535:
                    k("ds_read_b128", XF[ks][mt], vxr[ks], mod=f"offset:{base + mt * 2048}")
                else:
                    k("ds_read_b128", XF[ks][mt], vxr2[ks], mod=f"offset:{base + mt * 2048 - 65536}")

        def rd(i):
            ks, mat, t = items[i]
            off = base + mat * 14336 + ks * 7168
            if off + 896 <= 65535:
                k("ds_read_b64_tr_b16", WF[i % R][0:2], va[t], mod=f"offset:{off}")
                k("ds_read_b64_tr_b16", WF[i % R][2:4], va[t], mod=f"offset:{off + 896}")
            else:
                k("ds_read_b64_tr_b16", WF[i % R][0:2], vb[t], mod=f"offset:{off - 65536}")
                k("ds_read_b64_tr_b16", WF[i % R][2:4], vb[t], mod=f"offset:{off + 896 - 65536}")
        for i in range(R - 1):
            rd(i)
        for i, (ks, mat, t) in enumerate(items):
            if i + R - 1 < len(items):
                rd(i + R - 1)
                k.waitcnt(lgkm=2 * (R - 1))
            else:
                k.waitcnt(lgkm=2 * (len(items) - 1 - i))
            for mt in range(2):
                first = (s == 0 and ks == 0)
                k("v_mfma_f32_16x16x32_bf16", ACC[mat][t][mt], WF[i % R], XF[ks][mt], 0 if first else ACC[mat][t][mt])
            if pend and (i % 2 == 0):
                pend.pop(0)()
    if cnt_addr is not None:
        k("s_mov_b64", "exec", 1)
        k("ds_add_u32", vcnt, vone)
        k("s_mov_b64", "exec", -1)
    if os.environ.get("EPRIO"):
        k("s_setprio", os.environ["EPRIO"])
    k.stamp()
    smask = k.s(); sk1 = k.s(); sk2 = k.s()
    k("s_mov_b32", smask, "0xffff0000")
    k("s_mov_b32", sk1, fl(GK1))
    k("s_mov_b32", sk2, fl(GK2))
    xg = [k.v() for _ in range(4)]; xu = [k.v() for _ in range(4)]; e = [k.v() for _ in range(4)]
    O = [k.v(2), k.v(2)]
    n = 0
    for mt in range(2):
        for t in range(7):
            G = ACC[0][t][mt]; U = ACC[1][t][mt]
            for p in range(2):
                k("v_cvt_pk_bf16_f32", xg[2 * p + 1], G[2 * p], G[2 * p + 1])
                k("v_cvt_pk_bf16_f32", xu[2 * p + 1], U[2 * p], U[2 * p + 1])
                k("v_lshlrev_b32", xg[2 * p], 16, xg[2 * p + 1])
                k("v_and_b32", xg[2 * p + 1], smask, xg[2 * p + 1])
                k("v_lshlrev_b32", xu[2 * p], 16, xu[2 * p + 1])
                k("v_and_b32", xu[2 * p + 1], smask, xu[2 * p + 1])
            for r in range(4):
                k("v_mul_f32", e[r], xg[r], xg[r])
            for r in range(4):
                k("v_fma_f32", e[r], e[r], sk2, sk1) if False else None
                k("v_mul_f32", e[r], sk2, e[r])
            for r in range(4):
                k("v_add_f32", e[r], sk1, e[r])
            for r in range(4):
                k("v_mul_f32", e[r], e[r], xg[r])
            for r in range(4):
                k("v_exp_f32", e[r], e[r])
            for r in range(4):
                k("v_add_f32", e[r], 1.0, e[r])
            for r in range(4):
                k("v_rcp_f32", e[r], e[r])
            for r in range(4):
                k("v_mul_f32", e[r], e[r], xg[r])
            for p in range(2):
                k("v_cvt_pk_bf16_f32", e[2 * p + 1], e[2 * p], e[2 * p + 1])
                k("v_lshlrev_b32", e[2 * p], 16, e[2 * p + 1])
                k("v_and_b32", e[2 * p + 1], smask, e[2 * p + 1])
            for r in range(4):
                k("v_mul_f32", e[r], e[r], xu[r])
            o = O[n & 1]; n += 1
            k("v_cvt_pk_bf16_f32", o[0], e[0], e[1])
            k("v_cvt_pk_bf16_f32", o[1], e[2], e[3])
            k("buffer_store_dwordx2", o, vh[mt], sh, 0, mod=f"offen offset:{t * 32}")


def gen_k2(stamps=False):
    k = Asm()
    k.reset_regs(v0=1, s0=4)
    if stamps:
        k.stamp_init(8)
    k.stamp()
    name = "k2_kernel"
    k("s_cmp_ge_u32", "s2", "256")
    k("s_cbranch_scc1", "K2_END")
    ptr = load_kernargs(k)
    lane = k.v(); wv = k.v(); swave = k.s()
    k("v_and_b32", lane, 63, "v0")
    k("v_lshrrev_b32", wv, 6, "v0")
    k("v_readfirstlane_b32", swave, wv)
    k.waitcnt(lgkm=0)
    swg = k.s()
    k("s_mov_b32", swg, "s2")
    gemm1_body(k, ptr, swg, lane, wv, swave)
    k.stamp()
    k.waitcnt(vm=0)
    k.stamp()
    k.stamp_dump(ptr["dbg"], 5)
    k.label("K2_END")
    k("s_endpgm")
    return name, k, dict(grid=256, block=256, lds=G1_LDS)


def gen_k23(stamps=False, hilo=True):
    import k3
    k = Asm()
    k.reset_regs(v0=1, s0=4)
    if stamps:
        k.stamp_init(8)
    k.stamp()
    name = "k23_kernel"
    k("s_cmp_ge_u32", "s2", "256")
    k("s_cbranch_scc1", "K23_END")
    ptr = load_kernargs(k)
    lane = k.v(); wv = k.v(); swave = k.s()
    k("v_and_b32", lane, 63, "v0")
    k("v_lshrrev_b32", wv, 6, "v0")
    k("v_readfirstlane_b32", swave, wv)
    k.waitcnt(lgkm=0)
    swg = k.s()
    k("s_mov_b32", swg, "s2")
    k("s_cmp_ge_u32", swave, 4)
    k.clear()
    k("s_cbranch_scc1", "K23_CONV")
    mk = k.mark()
    k("s_setprio", os.environ.get("GPRIO", "3"))
    gemm1_body(k, ptr, swg, lane, wv, swave)
    k.stamp()
    k.waitcnt(vm=0)
    k.stamp()
    k.stamp_dump(ptr["dbg"], 5)
    k("s_endpgm")
    k.release(mk)
    k.label("K23_CONV")
    sv = k.stamps if stamps else None
    k.stamps = None
    k("s_sub_u32", swave, swave, 4)
    k3.conv_body(k, ptr, swg, lane, wv, swave, hilo, lbase=G1_LDS, nbar=7)
    k.label("K23_END")
    k("s_endpgm")
    return name, k, dict(grid=256, block=512, lds=G1_LDS + k3.CONV_LDS)
```

```python
import os
from asmgen import *
from k1 import *
import k2
from k2 import gemm1_body, G1_LDS

CPITCH = 4256
CV_BASE = G1_LDS
KI_BASE = CV_BASE + 4 * CPITCH
FL_BASE = KI_BASE + 2 * 5120
K23_LDS = FL_BASE + 64


def side_body(k, ptr, swg, lane, swave, hilo=True):
    nb = [1]

    def bar():
        assert nb[0] > 0
        k("s_barrier")
        nb[0] -= 1
    st = k.s()
    i16 = k.v(); q = k.v()
    k("v_and_b32", i16, 15, lane)
    k("v_lshrrev_b32", q, 4, lane)
    kg = q
    sd = k.s(); shw = k.s()
    k("s_lshl_b32", sd, swg, 1)
    k("s_lshr_b32", st, swave, 1)
    k("s_add_u32", sd, sd, st)
    k("s_and_b32", shw, swave, 1)
    sp = shw
    vfo = k.v(); vfp = k.v(); vft = k.v()
    k("s_lshl_b32", st, swave, 2)
    k("s_add_u32", st, st, FL_BASE)
    k("v_mov_b32", vfo, st)
    k("s_xor_b32", st, st, 4)
    k("v_mov_b32", vfp, st)
    k("v_mov_b32", vft, 0)
    k("ds_write_b32", vfo, vft)
    sfl = k.s()
    BAR_EARLY = True

    def signal(val):
        k.waitcnt(lgkm=0)
        k("v_mov_b32", vft, val)
        k("ds_write_b32", vfo, vft)

    def await_(val):
        lab = k.newlabel("SPIN")
        k.clear()
        k.label(lab)
        k("ds_read_b32", vft, vfp)
        k.waitcnt(lgkm=0)
        k("v_readfirstlane_b32", sfl, vft)
        k("s_cmp_lt_u32", sfl, val)
        k("s_cbranch_scc1", lab)
    soff = k.s()
    k("s_lshl_b32", soff, sd, 8)
    k("s_lshl_b32", st, shw, 7)
    k("s_add_u32", soff, soff, st)
    v2 = k.v()
    k("v_lshlrev_b32", v2, 1, lane)
    PAR = {}
    stmp = k.s(4)
    for nm in ("lar", "ai", "cr", "ci"):
        k.srd(stmp, ptr[nm], D * N * 2)
        PAR[nm] = k.v()
        k("buffer_load_ushort", PAR[nm], v2, stmp, soff, mod="offen")
    vz = k.v()
    k("v_mov_b32", vz, 0)
    ldt = k.v()
    k.srd(stmp, ptr["ldt"], D * 2)
    k("s_lshl_b32", st, sd, 1)
    k("buffer_load_ushort", ldt, vz, stmp, st, mod="offen")
    sxt = ws_srd(k, ptr, WS_XNT, D * XT_PITCH)
    sx = k.s(); sx4 = k.s()
    k("s_mul_i32", sx, sd, XT_PITCH)
    k("s_lshl_b32", st, sp, 3)
    k("s_add_u32", sx, sx, st)
    k("s_add_u32", sx4, sx, 4096)
    va = k.v()
    k("v_lshlrev_b32", va, 4, lane)
    W = [k.v(8) for _ in range(5)]
    for it in range(5):
        so = sx if it < 4 else sx4
        k("buffer_load_dwordx4", W[it][0:4], va, sxt, so, mod=f"offen offset:{(it & 3) * 1024}")
        k("buffer_load_dwordx4", W[it][4:8], va, sxt, so, mod=f"offen offset:{(it & 3) * 1024 + 16}")
    mk = k.mark()
    sc = {}
    for nm, val in (("l2e_hi", L2E_HI), ("l2e_lo", L2E_LO), ("ln2", LN2), ("i2p_hi", I2P_HI), ("i2p_lo", I2P_LO)):
        sc[nm] = k.s()
        k("s_mov_b32", sc[nm], fl(val))
    pF = k.v()
    k("v_lshlrev_b32", pF, 3, i16)
    k("v_cvt_f32_u32", pF, pF)
    pR0 = k.v(); pR2 = k.v()
    t0, t1, t2 = k.v(), k.v(), k.v()
    k("v_lshlrev_b32", t0, 1, i16)
    k("v_add_u32", t0, 240, t0)
    k("v_and_b32", t1, 1, i16)
    k("v_lshlrev_b32", t1, 2, t1)
    k("v_bfe_u32", t2, i16, 1, 1)
    k("v_lshl_add_u32", t1, t2, 8, t1)
    k("v_add_u32", t1, 512, t1)
    k("v_cmp_gt_u32", "vcc", 8, i16)
    k("v_cndmask_b32", pR0, t0, i16, "vcc")
    k("v_cmp_gt_u32", "vcc", 12, i16)
    k("v_cndmask_b32", pR0, t1, pR0, "vcc")
    k("v_lshlrev_b32", pR2, 7, i16)
    k("v_add_u32", pR2, 1024, pR2)
    k("v_cvt_f32_u32", pR0, pR0)
    k("v_cvt_f32_u32", pR2, pR2)
    dt = k.v(); ndl = k.v(); dt2 = k.v()
    k.waitcnt(vm=10)
    k.stamp()
    k("v_lshlrev_b32", ldt, 16, ldt)
    exp_precise(k, dt, ldt, t0, t1, sc)
    bf16r(k, dt, dt)
    k("v_mul_f32", ndl, sc["l2e_hi"], dt)
    k("v_sub_f32", ndl, 0, ndl)
    k("v_add_f32", dt2, dt, dt)
    for nm in ("lar", "ai", "cr", "ci"):
        k("v_lshlrev_b32", PAR[nm], 16, PAR[nm])
    LP = dict(ar2=k.v(), whi=k.v(), wlo=k.v(), cr=PAR["cr"], ci=PAR["ci"], gr=k.v(), gi=k.v())
    exp_precise(k, LP["ar2"], PAR["lar"], t0, t1, sc)
    bf16r(k, LP["ar2"], LP["ar2"])
    k("v_mul_f32", LP["ar2"], LP["ar2"], ndl)
    ai = PAR["ai"]
    k("v_mul_f32", ai, ai, dt)
    k("v_mul_f32", LP["whi"], sc["i2p_hi"], ai)
    k("v_fma_f32", LP["wlo"], ai, sc["i2p_hi"], neg(LP["whi"]))
    k("v_fma_f32", LP["wlo"], ai, sc["i2p_lo"], LP["wlo"])
    k("v_mul_f32", LP["cr"], LP["cr"], dt2)
    k("v_mul_f32", LP["ci"], LP["ci"], dt2)
    s128 = k.s()
    k("s_mov_b32", s128, fl(128.0))
    k("v_mul_f32", t0, s128, LP["ar2"])
    k("v_exp_f32", t0, t0)
    k("v_mul_f32", t1, s128, LP["whi"])
    k("v_fract_f32", t1, t1)
    k("v_fma_f32", t1, LP["wlo"], s128, t1)
    k("v_sin_f32", LP["gi"], t1)
    k("v_cos_f32", LP["gr"], t1)
    k("v_mul_f32", LP["gi"], LP["gi"], t0)
    k("v_mul_f32", LP["gr"], LP["gr"], t0)
    Dacc = [k.v(4) for _ in range(3)]
    B1, B2 = k.v(), k.v()
    mag = [k.v() for _ in range(3)]; rv = [k.v() for _ in range(3)]; tt = [k.v() for _ in range(3)]
    Er = [k.v() for _ in range(4)]; Ei = [k.v() for _ in range(4)]
    PS = [pR0, pR2, pF]
    names = ("ar2", "whi", "wlo", "cr", "ci", "gr", "gi")
    PRM = [{nm: k.v() for nm in names} for _ in range(2)]
    KB = eval(os.environ.get("KB", "(1,4,7,10,13)"))

    def bcast(s):
        for nm in names:
            k("v_mov_b32_dpp", PRM[s & 1][nm], LP[nm], mod=f"row_newbcast:{s} row_mask:0xf bank_mask:0xf")
    bcast(0)
    for s in range(16):
        P = PRM[s & 1]
        for j in range(3):
            k("v_mul_f32", mag[j], P["ar2"], PS[j])
        for j in range(3):
            k("v_mul_f32", rv[j], P["whi"], PS[j])
        for j in range(3):
            k("v_exp_f32", mag[j], mag[j])
        for j in range(3):
            k("v_fma_f32", tt[j], P["whi"], PS[j], neg(rv[j]))
        for j in range(3):
            k("v_fma_f32", tt[j], P["wlo"], PS[j], tt[j])
        for j in range(3):
            k("v_fract_f32", rv[j], rv[j])
        for j in range(3):
            k("v_add_f32", rv[j], rv[j], tt[j])
        for j in range(3):
            k("v_sin_f32", Ei[j], rv[j])
        for j in range(3):
            k("v_cos_f32", Er[j], rv[j])
        if s < 15:
            bcast(s + 1)
        for j in (2, 0, 1):
            k("v_mul_f32", Ei[j], mag[j], Ei[j])
            k("v_mul_f32", Er[j], mag[j], Er[j])
        k("v_mul_f32", B1, P["ci"], Ei[2])
        k("v_mul_f32", B2, P["cr"], Ei[2])
        k("v_mul_f32", Er[3], P["gi"], Ei[0])
        k("v_mul_f32", Ei[3], P["gr"], Ei[0])
        k("v_fma_f32", B1, P["cr"], Er[2], neg(B1))
        k("v_fma_f32", B2, neg(P["ci"]), Er[2], neg(B2))
        k("v_fma_f32", Er[3], P["gr"], Er[0], neg(Er[3]))
        k("v_fma_f32", Ei[3], P["gi"], Er[0], Ei[3])
        for r, j in ((0, 0), (1, 3), (2, 1)):
            k("v_mfma_f32_16x16x4_f32", Dacc[r], Er[j], B1, Dacc[r] if s else 0)
        for r, j in ((0, 0), (1, 3), (2, 1)):
            k("v_mfma_f32_16x16x4_f32", Dacc[r], Ei[j], B2, Dacc[r])
        if s == 1:
            k.waitcnt(lgkm=0)
            bar()
    k.stamp()
    sreg = k.s()
    k("s_lshr_b32", sreg, swave, 1)
    k("s_mul_i32", sreg, sreg, 2 * CPITCH)
    k("s_add_u32", sreg, sreg, CV_BASE)
    vb = k.v()
    k("v_mul_u32_u24", vb, 48, lane)
    k("v_add_u32", vb, sreg, vb)
    k("s_cmp_eq_u32", shw, 0)
    k.clear()
    k("s_cbranch_scc1", "K23_KG_A")
    for r in range(3):
        k("ds_write_b128", vb, Dacc[r], mod=f"offset:{16 * r}")
    signal(1)
    await_(1)
    k("s_branch", "K23_KG_B")
    k.label("K23_KG_A")
    await_(1)
    P2 = [k.v(4) for _ in range(3)]
    for r in range(3):
        k("ds_read_b128", P2[r], vb, mod=f"offset:{16 * r}")
    k.waitcnt(lgkm=0)
    for r in range(3):
        for j in range(4):
            k("v_add_f32", Dacc[r][j], Dacc[r][j], P2[r][j])
    mx = k.v(); mt = k.v()
    k("v_max3_f32", mx, absm(Dacc[0][0]), absm(Dacc[0][1]), absm(Dacc[0][2]))
    vals = [Dacc[r][j] for r in range(3) for j in range(4)][3:]
    for a in range(0, 8, 2):
        k("v_max3_f32", mx, absm(vals[a]), absm(vals[a + 1]), mx)
    k("v_max_f32", mx, absm(vals[8]), mx)
    reduce64_sum(k, [mx], [mt], op="v_max_f32")
    scl = k.v(); inv = k.v()
    k("v_bfe_u32", t0, mx, 23, 8)
    k("v_sub_u32", t1, 268, t0)
    k("v_mov_b32", t2, 240)
    k("v_med3_i32", t1, t1, 14, t2)
    k("v_lshlrev_b32", scl, 23, t1)
    k("v_sub_u32", t1, 254, t1)
    k("v_lshlrev_b32", inv, 23, t1)
    ub = k.v(); uadd = k.v()
    k("v_lshlrev_b32", t0, 2, q)
    k("v_lshl_add_u32", t0, i16, 3, t0)
    k("v_lshlrev_b32", t1, 2, i16)
    k("v_add_u32", t1, 256, t1)
    k("v_mov_b32", t2, 384)
    k("v_lshl_add_u32", t2, i16, 1, t2)
    k("v_cmp_gt_u32", "vcc", 2, q)
    k("v_cndmask_b32", ub, t1, t0, "vcc")
    k("v_mov_b32", uadd, 64)
    k("v_mov_b32", t0, 128)
    k("v_cndmask_b32", uadd, uadd, t0, "vcc")
    k("v_cmp_gt_u32", "vcc", 3, q)
    k("v_cndmask_b32", ub, t2, ub, "vcc")
    k("v_mov_b32", t0, 32)
    k("v_cndmask_b32", uadd, t0, uadd, "vcc")
    jx = k.v()
    k("v_mov_b32", t0, 62)
    k("v_mov_b32", t1, 0)
    k("v_cndmask_b32", jx, t0, t1, "vcc")
    k("v_lshlrev_b32", ub, 2, ub)
    k("v_add_u32", ub, sreg, ub)
    k("v_lshlrev_b32", uadd, 2, uadd)
    k("v_lshlrev_b32", jx, 2, jx)
    a_t0lo = ub
    a_t0hi = k.v(); a_t1lo = k.v(); a_t1hi = k.v(); a_t2 = k.v()
    k("v_add_u32", a_t0hi, ub, jx)
    k("v_add_u32", a_t1lo, ub, uadd)
    k("v_add_u32", a_t1hi, a_t1lo, jx)
    k("v_lshl_add_u32", a_t2, q, 6, i16)
    k("v_lshlrev_b32", a_t2, 2, a_t2)
    k("v_add_u32", a_t2, sreg, a_t2)
    hv = [k.v() for _ in range(4)]; lv = [k.v() for _ in range(4)]; tv = [k.v() for _ in range(4)]
    for r in range(3):
        for j in range(4):
            k("v_mul_f32", tv[j], Dacc[r][j], scl)
        for j in range(4):
            k("v_cvt_f16_f32", hv[j], tv[j])
        for j in range(4):
            k("v_cvt_f32_f16", lv[j], hv[j])
        for j in range(4):
            k("v_sub_f32", lv[j], tv[j], lv[j])
        for j in range(4):
            k("v_cvt_f16_f32", lv[j], lv[j])
        for j in range(4):
            k("v_pack_b32_f16", hv[j], hv[j], lv[j])
        for j in range(4):
            if r < 2:
                addr = ((a_t0lo, a_t0hi), (a_t1lo, a_t1hi))[r][j >> 1]
                off = 4 * j
            else:
                addr = a_t2
                off = 2048 + 64 * j
            k("ds_write_b32", addr, hv[j], mod=f"offset:{off}")
    k("v_mov_b32", t0, sreg)
    k("ds_write_b32", t0, inv, mod=f"offset:{767 * 4}")
    signal(1)
    k.clear()
    k.label("K23_KG_B")
    k.release(mk)
    k.stamp()
    sreg = k.s()
    k("s_lshr_b32", sreg, swave, 1)
    k("s_mul_i32", sreg, sreg, 2 * CPITCH)
    k("s_add_u32", sreg, sreg, CV_BASE)
    ski = k.s()
    k("s_lshr_b32", ski, swave, 1)
    k("s_mul_i32", ski, ski, 5120)
    k("s_add_u32", ski, ski, KI_BASE)
    kinv = k.v()
    t0, t1 = k.v(), k.v()
    k("v_mov_b32", t0, sreg)
    k("ds_read_b32", kinv, t0, mod=f"offset:{767 * 4}")
    m2 = k.mark()
    vl = k.v()
    k("v_lshlrev_b32", vl, 4, lane)
    k("s_lshl_b32", st, shw, 10)
    k("v_add_u32", vl, st, vl)
    sbias = k.s()
    k("s_sub_u32", sbias, sreg, 4 * 17024)
    RH = k.v(16); OH = k.v(8)
    ua = [k.v() for _ in range(4)]; ut = [k.v() for _ in range(4)]; tv = [k.v() for _ in range(4)]
    sperm_lo = k.s()
    k("s_mov_b32", sperm_lo, "0x05040100")
    for e0_ in range(0, 16, 4):
        for j in range(4):
            k("v_add_u32", ut[j], e0_ + j, vl)
        for j in range(4):
            k("v_cvt_f32_u32", ua[j], ut[j])
        for j in range(4):
            k("v_cvt_pk_bf16_f32", ua[j], ua[j], ua[j])
        for j in range(4):
            k("v_and_b32", ua[j], "0xffff", ua[j])
        for j in range(4):
            k("v_lshl_add_u32", ua[j], ua[j], 2, sbias)
            k("v_lshl_add_u32", tv[j], ut[j], 2, sreg)
        for j in range(4):
            k("v_cmp_gt_u32", "vcc", 128, ut[j])
            k("v_cndmask_b32", ua[j], ua[j], tv[j], "vcc")
        for j in range(4):
            e = e0_ + j
            pos = (e >> 3) * 8 + (7 - (e & 7))
            k("ds_read_b32", RH[pos], ua[j])
    zz = k.v(4)
    for j in range(4):
        k("v_mov_b32", zz[j], 0)
    vki = k.v(); vki2 = k.v()
    s78 = k.s()
    k("s_mov_b32", s78, "0x78")
    k("v_bfe_u32", vki, vl, 7, 2)
    k("v_lshlrev_b32", vki, 1, vki)
    k("v_lshrrev_b32", vki, vki, s78)
    k("v_and_b32", vki, 3, vki)
    k("v_bfe_u32", vki2, vl, 3, 2)
    k("v_xor_b32", vki, vki, vki2)
    k("v_xor_b32", vki2, 1, vki)
    k("v_lshrrev_b32", tv[0], 5, vl)
    k("v_lshlrev_b32", tv[0], 6, tv[0])
    k("v_add_u32", tv[0], ski, tv[0])
    k("v_lshl_add_u32", vki, vki, 4, tv[0])
    k("v_lshl_add_u32", vki2, vki2, 4, tv[0])
    vkz = k.v()
    k("v_and_b32", vkz, 31, lane)
    k("v_lshlrev_b32", vkz, 4, vkz)
    k("s_lshl_b32", st, shw, 9)
    k("s_add_u32", st, st, ski)
    k("v_add_u32", vkz, st, vkz)
    k("ds_write_b128", vkz, zz)
    k.waitcnt(lgkm=1)
    for j in range(8):
        k("v_perm_b32", OH[j], RH[2 * j + 1], RH[2 * j], sperm_lo)
    k("ds_write_b128", vki, OH[0:4], mod="offset:1024")
    k("ds_write_b128", vki2, OH[4:8], mod="offset:1024")
    signal(2)
    await_(2)
    k.release(m2)
    if os.environ.get("CPRIO"):
        k("s_setprio", os.environ["CPRIO"])
    lab = k.newlabel("WG")
    vgc = k.v()
    k("v_mov_b32", vgc, FL_BASE + 32)
    k.clear()
    k.label(lab)
    k("s_sleep", 1)
    k("ds_read_b32", vft, vgc)
    k.waitcnt(lgkm=0)
    k("v_readfirstlane_b32", sfl, vft)
    k("s_cmp_lt_u32", sfl, 32)
    k("s_cbranch_scc1", lab)
    m3 = k.mark()
    slb = k.s()
    k("s_mul_i32", slb, swave, 4 * CPITCH)
    vw = k.v()
    k("v_add_u32", vw, slb, va)
    T1 = k.v(4); T2 = k.v(4); T3 = k.v(4)
    sex = k.s(2)
    k.waitcnt(vm=0)
    for it in range(5):
        w = W[it]
        if it == 4:
            k("v_cmp_gt_u32", "vcc", 4, lane)
            k("s_and_saveexec_b64", sex, "vcc")
        for j in range(4):
            k("v_alignbit_b32", T1[j], w[j + 1], w[j], 16)
            k("v_mov_b32", T2[j], w[j + 1])
            k("v_alignbit_b32", T3[j], w[j + 2], w[j + 1], 16)
        k("ds_write_b128", vw, w[0:4], mod=f"offset:{it * 1024}")
        k("ds_write_b128", vw, T1, mod=f"offset:{it * 1024 + CPITCH}")
        k("ds_write_b128", vw, T2, mod=f"offset:{it * 1024 + 2 * CPITCH}")
        k("ds_write_b128", vw, T3, mod=f"offset:{it * 1024 + 3 * CPITCH}")
        if it == 4:
            k("s_mov_b64", "exec", sex)
    k.release(m3)
    signal(3)
    await_(3)
    k.stamp()
    syt = ws_srd(k, ptr, WS_YT, D * L * 2)
    vr = k.v()
    k("v_add_u32", t0, 1, i16)
    k("v_and_b32", t1, 7, t0)
    k("v_mul_u32_u24", vr, CPITCH, t1)
    k("v_lshrrev_b32", t0, 3, t0)
    k("v_sub_u32", t0, t0, kg)
    k("v_add_u32", t0, 3, t0)
    k("v_lshl_add_u32", vr, t0, 4, vr)
    k("s_lshr_b32", st, swave, 1)
    k("s_mul_i32", st, st, 8 * CPITCH)
    sb2 = k.s()
    k("s_lshl_b32", sb2, sp, 5)
    k("s_add_u32", st, st, sb2)
    k("v_add_u32", vr, st, vr)
    vkrs = [k.v() for _ in range(3)]
    vm = k.v(); vm2 = k.v()
    s78 = k.s()
    k("s_mov_b32", s78, "0x78")
    Y = [k.v(4) for _ in range(4)]
    NBF = 3
    KF = [[k.v(4) for _ in range(4)] for _ in range(NBF)]
    A = [[k.v(4) for _ in range(4)] for _ in range(NBF)]

    def rd(c0):
        vkr = vkrs[c0 % 3]
        k("v_add_u32", vm, 16 - c0, i16)
        k("v_bfe_u32", vm2, vm, 2, 2)
        k("v_lshlrev_b32", vm2, 1, vm2)
        k("v_lshrrev_b32", vm2, vm2, s78)
        k("v_and_b32", vm2, 3, vm2)
        k("v_xor_b32", vm2, vm2, kg)
        k("v_lshlrev_b32", vm, 6, vm)
        k("v_lshl_add_u32", vkr, vm2, 4, vm)
        k("v_add_u32", vkr, ski, vkr)
        for t in range(4):
            k("ds_read_b128", KF[c0 % NBF][t], vkr, mod=f"offset:{1024 * t}")
        for c1 in range(4):
            k("ds_read_b128", A[c0 % NBF][c1], vr, mod=f"offset:{64 * (16 * c1 + c0)}")
    swd = k.s(4); k.srd(swd, ptr["wd"], F * D * 2)
    swo = k.s()
    k("s_lshr_b32", swo, swg, 3)
    k("s_lshl_b32", swo, swo, 2)
    k("s_add_u32", swo, swo, swave)
    k("s_mul_i32", swo, swo, 14 * 1024)
    vpd = k.v(4)
    rd(0)
    for c0 in range(16):
        if c0 == 0:
            rd(1)
        if c0 < 15:
            k.waitcnt(lgkm=8)
        else:
            k.waitcnt(lgkm=0)
        if c0 + 2 < 16:
            rd(c0 + 2)
        for c1 in range(4):
            for T in range(c1, 4):
                first = (c0 == 0 and c1 == 0)
                k("v_mfma_f32_16x16x32_f16", Y[T], A[c0 % NBF][c1], KF[c0 % NBF][T - c1], 0 if first else Y[T])
        if c0 < 14:
            k("buffer_load_dwordx4", vpd, va, swd, swo, mod="offen")
            k("s_add_u32", swo, swo, 1024)
    vo = k.v()
    k("v_lshlrev_b32", vo, 6, i16)
    k("v_lshl_add_u32", vo, kg, 3, vo)
    k("v_add_u32", vo, sb2, vo)
    sk = k.s()
    k("s_lshl_b32", sk, sd, 12)
    O = [k.v(2) for _ in range(4)]
    for T in range(4):
        for r in range(4):
            k("v_mul_f32", Y[T][r], Y[T][r], kinv)
        k("v_cvt_pk_bf16_f32", O[T][0], Y[T][0], Y[T][1])
        k("v_cvt_pk_bf16_f32", O[T][1], Y[T][2], Y[T][3])
        k("buffer_store_dwordx2", O[T], vo, syt, sk, mod=f"offen offset:{T * 1024}")


def gen_k23b(stamps=False, hilo=True):
    k = Asm()
    k.reset_regs(v0=1, s0=4)
    if stamps:
        k.stamp_init(8)
    k.stamp()
    name = "k23_kernel"
    k("s_cmp_ge_u32", "s2", "256")
    k("s_cbranch_scc1", "K23_END")
    ptr = load_kernargs(k)
    lane = k.v(); wv = k.v(); swave = k.s()
    k("v_and_b32", lane, 63, "v0")
    k("v_lshrrev_b32", wv, 6, "v0")
    k("v_readfirstlane_b32", swave, wv)
    k.waitcnt(lgkm=0)
    swg = k.s()
    k("s_mov_b32", swg, "s2")
    k("s_cmp_ge_u32", swave, 4)
    k.clear()
    k("s_cbranch_scc1", "K23_SIDE")
    mk = k.mark()
    side_st = os.environ.get("SIDE_ST")
    sv = k.stamps if stamps else None
    if side_st:
        k.stamps = None
    k("s_setprio", os.environ.get("GPRIO", "0"))
    gemm1_body(k, ptr, swg, lane, wv, swave, cnt_addr=FL_BASE + 32)
    k.stamp()
    k.waitcnt(vm=0)
    k.stamp()
    k.stamp_dump(ptr["dbg"], 5)
    k("s_endpgm")
    k.release(mk)
    k.label("K23_SIDE")
    k.stamps = sv if (side_st and stamps) else None
    k.nstamp = 1
    k("s_sub_u32", swave, swave, 4)
    k("s_setprio", os.environ.get("SPRIO", "3"))
    side_body(k, ptr, swg, lane, swave, hilo)
    if side_st and stamps:
        k.stamp()
        k("v_subrev_u32", "v0", 256, "v0") if False else k.raw("    v_subrev_u32 v0, 256, v0")
        k.stamp_dump(ptr["dbg"], 5)
    k.label("K23_END")
    k("s_endpgm")
    return name, k, dict(grid=256, block=512, lds=K23_LDS)
```

```python
from asmgen import *
from k1 import *

import os
BARS = eval(os.environ.get('BARS', '(0,1,2,3,4,5)'))
CPITCH = 4256
CONV_LDS = 2 * 2 * CPITCH


def conv_body(k, ptr, swg, lane, wv, swave, hilo=True, lbase=0, nbar=0):
    sxt = ws_srd(k, ptr, WS_XNT, D * XT_PITCH)
    skh = ws_srd(k, ptr, WS_KH, D * L * 2)
    skl = ws_srd(k, ptr, WS_KL, D * L * 2)
    ski = ws_srd(k, ptr, WS_KINV, D * 4)
    syt = ws_srd(k, ptr, WS_YT, D * L * 2)
    sd = k.s(); sp = k.s(); st = k.s()
    k("s_lshl_b32", sd, swg, 1)
    k("s_lshr_b32", st, swave, 1)
    k("s_add_u32", sd, sd, st)
    k("s_and_b32", sp, swave, 1)
    i16 = k.v(); kg = k.v()
    k("v_and_b32", i16, 15, lane)
    k("v_lshrrev_b32", kg, 4, lane)
    vk = k.v()
    k("v_lshlrev_b32", vk, 6, i16)
    k("v_lshl_add_u32", vk, kg, 4, vk)
    sk = k.s()
    k("s_lshl_b32", sk, sd, 12)
    KH = [k.v(4) for _ in range(4)]
    KL = [k.v(4) for _ in range(4)] if hilo else None
    for t in range(4):
        k("buffer_load_dwordx4", KH[t], vk, skh, sk, mod=f"offen offset:{t * 1024}")
    if hilo:
        for t in range(4):
            k("buffer_load_dwordx4", KL[t], vk, skl, sk, mod=f"offen offset:{t * 1024}")
    vz = k.v()
    k("v_mov_b32", vz, 0)
    kinv = k.v()
    k("s_lshl_b32", st, sd, 2)
    k("buffer_load_dword", kinv, vz, ski, st, mod="offen")
    m0 = k.mark()
    sx = k.s()
    k("s_mul_i32", sx, sd, XT_PITCH)
    k("s_lshl_b32", st, sp, 11)
    k("s_add_u32", sx, sx, st)
    va = k.v()
    k("v_lshlrev_b32", va, 4, lane)
    W = [k.v(8) for _ in range(3)]
    for it in range(3):
        k("buffer_load_dwordx4", W[it][0:4], va, sxt, sx, mod=f"offen offset:{it * 1024}")
        k("buffer_load_dword", W[it][4], va, sxt, sx, mod=f"offen offset:{it * 1024 + 16}")
    if nbar:
        k("s_barrier")
        nbar -= 1
    slb = k.s()
    k("s_lshr_b32", slb, swave, 1)
    k("s_mul_i32", slb, slb, 2 * CPITCH)
    k("s_add_u32", slb, slb, st)
    k("s_add_u32", slb, slb, str(lbase))
    vw = k.v()
    k("v_add_u32", vw, slb, va)
    T1 = k.v(4)
    sex = k.s(2)
    ntl = k.s()
    k("s_lshl_b32", ntl, sp, 2)
    for it in range(3):
        k.waitcnt(vm=2 * (2 - it))
        w = W[it]
        if it == 2:
            k("v_cmp_gt_u32", "vcc", ntl, lane)
            k("s_and_saveexec_b64", sex, "vcc")
            k("s_cbranch_execz", "CONV_NOTAIL")
        for j in range(4):
            k("v_alignbit_b32", T1[j], w[j + 1], w[j], 16)
        k("ds_write_b128", vw, w[0:4], mod=f"offset:{it * 1024}")
        k("ds_write_b128", vw, T1, mod=f"offset:{it * 1024 + CPITCH}")
        if it == 2:
            k.label("CONV_NOTAIL")
            k("s_mov_b64", "exec", sex)
    k.release(m0)
    vr = k.v(); t0 = k.v(); t1 = k.v()
    k("v_add_u32", t0, 1, i16)
    k("v_and_b32", t1, 1, t0)
    k("v_mul_u32_u24", vr, CPITCH, t1)
    k("v_sub_u32", t0, t0, t1)
    k("v_add_u32", t0, 24, t0)
    k("v_lshlrev_b32", t1, 3, kg)
    k("v_sub_u32", t0, t0, t1)
    k("v_lshl_add_u32", vr, t0, 1, vr)
    k("s_lshr_b32", st, swave, 1)
    k("s_mul_i32", st, st, 2 * CPITCH)
    sb2 = k.s()
    k("s_lshl_b32", sb2, sp, 5)
    k("s_add_u32", st, st, sb2)
    k("s_add_u32", st, st, str(lbase))
    k("v_add_u32", vr, st, vr)
    k.stamp()
    k.waitcnt(lgkm=0)
    k("s_barrier")
    k.stamp()
    vrs = [vr] + [k.v() for _ in range(3)]
    for j in range(1, 4):
        k("v_add_u32", vrs[j], 1024 * j, vr)
    Y = [k.v(4) for _ in range(4)]
    Z = [[k.v(4) for _ in range(4)] for _ in range(2)]
    NA = 8
    A = [k.v(4) for _ in range(NA)]
    seq = [(c0, c1) for c0 in range(16) for c1 in range(4)]
    PF = 6

    def rd(idx):
        c0, c1 = seq[idx]
        o = 16 * c0
        k("ds_read2_b32", A[idx % NA][0:2], vrs[c1], mod=f"offset0:{o} offset1:{o + 1}")
        k("ds_read2_b32", A[idx % NA][2:4], vrs[c1], mod=f"offset0:{o + 2} offset1:{o + 3}")

    def shift_add(c0):
        z = Z[c0 & 1]
        for T in range(4):
            for r in range(4):
                if c0 == 0:
                    k("v_mov_b32", Y[T][r], z[T][r])
                else:
                    k("v_add_f32_dpp", Y[T][r], z[T][r], Y[T][r], mod=f"row_shr:{c0} row_mask:0xf bank_mask:0xf")
                    if T > 0:
                        k("v_add_f32_dpp", Y[T][r], z[T - 1][r], Y[T][r], mod=f"row_shl:{16 - c0} row_mask:0xf bank_mask:0xf")

    swd = k.s(4); k.srd(swd, ptr["wd"], F * D * 2)
    swo = k.s()
    k("s_lshr_b32", swo, swg, 3)
    k("s_lshl_b32", swo, swo, 2)
    k("s_add_u32", swo, swo, swave)
    k("s_mul_i32", swo, swo, 14 * 1024)
    vpf = k.v(); vpd = k.v(4)
    k("v_lshlrev_b32", vpf, 4, lane)
    pfleft = [14]
    barsleft = [nbar]
    for idx in range(PF):
        rd(idx)
    k.waitcnt(vm=0)
    for idx, (c0, c1) in enumerate(seq):
        if idx + PF < len(seq):
            rd(idx + PF)
            k.waitcnt(lgkm=2 * PF)
        else:
            k.waitcnt(lgkm=2 * (len(seq) - 1 - idx))
        z = Z[c0 & 1]
        a = A[idx % NA]
        for t in range(4 - c1):
            T = c1 + t
            k("v_mfma_f32_16x16x32_f16", z[T], a, KH[t], z[T] if c1 else 0)
            if hilo:
                k("v_mfma_f32_16x16x32_f16", z[T], a, KL[t], z[T])
        if c1 == 1 and c0 > 0:
            shift_add(c0 - 1)
        if c0 >= 8 and c1 < 2 and pfleft[0] > 0:
            k("buffer_load_dwordx4", vpd, vpf, swd, swo, mod="offen")
            k("s_add_u32", swo, swo, 1024)
            pfleft[0] -= 1
        if nbar and c1 == 3 and (c0 in BARS) and barsleft[0] > 0:
            k("s_barrier")
            barsleft[0] -= 1
    shift_add(15)
    k.stamp()
    vo = k.v()
    k("v_lshlrev_b32", vo, 6, i16)
    k("v_lshl_add_u32", vo, kg, 3, vo)
    k("v_add_u32", vo, sb2, vo)
    O = [k.v(2) for _ in range(4)]
    for T in range(4):
        for r in range(4):
            k("v_mul_f32", Y[T][r], Y[T][r], kinv)
        k("v_cvt_pk_bf16_f32", O[T][0], Y[T][0], Y[T][1])
        k("v_cvt_pk_bf16_f32", O[T][1], Y[T][2], Y[T][3])
        k("buffer_store_dwordx2", O[T], vo, syt, sk, mod=f"offen offset:{T * 1024}")


def gen_k3(hilo=True, stamps=False):
    k = Asm()
    k.reset_regs(v0=1, s0=4)
    if stamps:
        k.stamp_init(8)
    k.stamp()
    k.stamp_real()
    name = "k3_kernel"
    k("s_cmp_ge_u32", "s2", "256")
    k("s_cbranch_scc1", "K3_END")
    ptr = load_kernargs(k)
    lane = k.v(); wv = k.v(); swave = k.s()
    k("v_and_b32", lane, 63, "v0")
    k("v_lshrrev_b32", wv, 6, "v0")
    k("v_readfirstlane_b32", swave, wv)
    k.waitcnt(lgkm=0)
    swg = k.s()
    k("s_mov_b32", swg, "s2")
    conv_body(k, ptr, swg, lane, wv, swave, hilo)
    k.waitcnt(vm=0)
    k.stamp()
    k.stamp_real()
    k.stamp_dump(ptr["dbg"], 5)
    k.label("K3_END")
    k("s_endpgm")
    return name, k, dict(grid=256, block=256, lds=CONV_LDS)
```

```python
import math
from asmgen import *
from k1 import *

RP = 272
G2_PART = 64 * RP
YP = 144
G2_Y = 131072
G2_LDS = G2_Y + 64 * YP
NLOG2E = -math.log2(math.e)


def gemm2_body(k, ptr, swg, lane, wv, swave):
    sh = ws_srd(k, ptr, WS_H, L * F * 2)
    sxn = ws_srd(k, ptr, WS_XN, L * D * 2)
    syt = ws_srd(k, ptr, WS_YT, L * D * 2)
    sW = k.s(4); k.srd(sW, ptr["wd"], F * D * 2)
    sx = k.s(4); k.srd(sx, ptr["u"], L * D * 2)
    sdk = k.s(4); k.srd(sdk, ptr["dsk"], D * 2)
    so = k.s(4); k.srd(so, ptr["out"], L * D * 2)
    st = k.s(); slt = k.s(); sdt = k.s()
    import os
    if os.environ.get("MAPB"):
        k("s_lshr_b32", slt, swg, 3)
        k("s_and_b32", sdt, swg, 7)
    else:
        k("s_and_b32", slt, swg, 7)
        k("s_lshl_b32", slt, slt, 2)
        k("s_lshr_b32", st, swg, 6)
        k("s_add_u32", slt, slt, st)
        k("s_lshr_b32", sdt, swg, 3)
        k("s_and_b32", sdt, sdt, 7)
    i16 = k.v(); kg = k.v()
    k("v_and_b32", i16, 15, lane)
    k("v_lshrrev_b32", kg, 4, lane)
    t0, t1, t2 = k.v(), k.v(), k.v()
    vd = [k.v(), k.v()]
    k("v_bfe_u32", t0, lane, 1, 2)
    k("v_and_b32", t1, 1, kg)
    k("v_xor_b32", t0, t0, t1)
    k("v_and_b32", t2, 1, lane)
    k("v_lshlrev_b32", t2, 4, t2)
    k("v_lshrrev_b32", t1, 3, lane)
    k("v_lshl_add_u32", t2, t1, 10, t2)
    k("v_lshl_add_u32", vd[0], t0, 5, t2)
    k("v_xor_b32", t0, 2, t0)
    k("v_lshl_add_u32", vd[1], t0, 5, t2)
    sgo = k.s()
    k("s_mul_i32", sgo, swave, 448 * 1024)
    k("s_lshl_b32", st, sdt, 7)
    k("s_add_u32", sgo, sgo, st)
    slo = k.s()
    k("s_lshl_b32", slo, swave, 15)
    sso = k.s()
    vdh = k.v()
    k("v_lshrrev_b32", t0, 3, lane)
    k("v_and_b32", t1, 7, lane)
    k("v_xor_b32", t1, t1, t0)
    k("v_lshlrev_b32", t1, 4, t1)
    k("v_mul_u32_u24", t0, 3584, t0)
    k("v_add_u32", vdh, t0, t1)
    sl0 = k.s()
    k("s_lshl_b32", sl0, slt, 6)
    shg = k.s()
    k("s_mul_i32", shg, sl0, 3584)
    k("s_mul_i32", st, swave, 896)
    k("s_add_u32", shg, shg, st)

    def loads(s):
        b = (s & 1) * 16384
        for j in range(8):
            k("s_add_u32", sso, sgo, str((s * 64 + 8 * j) * 1024))
            k("s_add_u32", "m0", slo, str(b + j * 1024))
            k("buffer_load_dwordx4", vd[j & 1], sW, sso, mod="offen lds")
            k("s_add_u32", sso, shg, str(s * 128 + j * 8 * 3584))
            k("s_add_u32", "m0", slo, str(b + 8192 + j * 1024))
            k("buffer_load_dwordx4", vdh, sh, sso, mod="offen lds")

    k.stamp()
    loads(0)
    k.stamp()
    ve = k.v(); vy = k.v(); vdk = k.v()
    k("v_lshrrev_b32", t0, 2, "v0")
    k("v_and_b32", t1, 3, "v0")
    k("v_add_u32", t2, sl0, t0)
    k("v_lshlrev_b32", ve, 10, t2)
    k("v_lshl_add_u32", ve, t1, 5, ve)
    k("s_lshl_b32", st, sdt, 7)
    k("v_add_u32", ve, st, ve)
    k("v_lshlrev_b32", vdk, 5, t1)
    k("v_add_u32", vdk, st, vdk)
    sd0 = k.s()
    k("s_lshl_b32", sd0, sdt, 6)
    k("v_add_u32", t2, sd0, t0)
    k("v_lshlrev_b32", vy, 12, t2)
    k("v_lshl_add_u32", vy, t1, 5, vy)
    k("s_lshl_b32", st, slt, 7)
    k("v_add_u32", vy, st, vy)
    EX = k.v(8); EN = k.v(8); ED = k.v(8); EY = k.v(8)
    for (R_, v_, s_) in ((EX, ve, sx), (EN, ve, sxn), (ED, vdk, sdk), (EY, vy, syt)):
        k("buffer_load_dwordx4", R_[0:4], v_, s_, 0, mod="offen")
        k("buffer_load_dwordx4", R_[4:8], v_, s_, 0, mod="offen offset:16")
    vyl = k.v()
    k("v_mul_u32_u24", vyl, YP, t0)
    k("v_lshl_add_u32", vyl, t1, 5, vyl)
    k("v_add_u32", vyl, G2_Y, vyl)
    va = [k.v() for _ in range(4)]
    rr = k.v(); gg = k.v()
    k("v_lshrrev_b32", rr, 2, i16)
    k("v_lshrrev_b32", gg, 1, rr)
    k("v_and_b32", t1, 1, kg)
    k("v_lshl_add_u32", gg, t1, 1, gg)
    k("v_lshl_add_u32", t0, kg, 3, rr)
    k("v_lshlrev_b32", t0, 7, t0)
    k("v_and_b32", t1, 3, i16)
    k("v_lshl_add_u32", t0, t1, 3, t0)
    k("v_add_u32", t0, slo, t0)
    for t in range(4):
        k("v_xor_b32", t1, t, gg)
        k("v_lshl_add_u32", va[t], t1, 5, t0)
    vhr = [k.v(), k.v()]
    k("v_and_b32", t1, 7, i16)
    k("v_xor_b32", t1, t1, kg)
    k("v_lshlrev_b32", t0, 7, i16)
    k("v_add_u32", t0, slo, t0)
    k("v_lshl_add_u32", vhr[0], t1, 4, t0)
    k("v_xor_b32", t1, 4, t1)
    k("v_lshl_add_u32", vhr[1], t1, 4, t0)
    ACC = [[k.v(4) for _ in range(4)] for _ in range(4)]
    WF = [[k.v(4) for _ in range(4)] for _ in range(2)]
    HF = [[k.v(4) for _ in range(4)] for _ in range(4)]

    def rd(s, ks):
        b = (s & 1) * 16384
        for t in range(4):
            off = b + ks * 4096
            k("ds_read_b64_tr_b16", WF[ks][t][0:2], va[t], mod=f"offset:{off}")
            k("ds_read_b64_tr_b16", WF[ks][t][2:4], va[t], mod=f"offset:{off + 512}")
        for lt in range(4):
            k("ds_read_b128", HF[ks][lt], vhr[ks], mod=f"offset:{b + 8192 + lt * 2048}")
    NSTEP = 7
    for s in range(NSTEP):
        if s + 1 < NSTEP:
            loads(s + 1)
            k.waitcnt(vm=16)
        else:
            k.waitcnt(vm=0)
        if s == 0:
            k.stamp()
        rd(s, 0)
        rd(s, 1)
        for ks in range(2):
            k.waitcnt(lgkm=12 if ks == 0 else 0)
            for dt in range(4):
                for lt in range(4):
                    k("v_mfma_f32_16x16x32_bf16", ACC[dt][lt], WF[ks][dt], HF[ks][lt], ACC[dt][lt] if (s or ks) else 0)
    k.stamp()
    k("s_barrier")
    k.stamp()
    vp = k.v()
    k("v_mul_u32_u24", vp, RP, i16)
    k("v_lshl_add_u32", vp, kg, 4, vp)
    k("s_mul_i32", st, swave, G2_PART)
    k("v_add_u32", vp, st, vp)
    for dt in range(4):
        for lt in range(4):
            k("ds_write_b128", vp, ACC[dt][lt], mod=f"offset:{lt * 16 * RP + dt * 64}")
    k("ds_write_b128", vyl, EY[0:4])
    k("ds_write_b128", vyl, EY[4:8], mod="offset:16")
    k.waitcnt(lgkm=0)
    k("s_barrier")
    vq = k.v()
    k("v_lshrrev_b32", t0, 2, "v0")
    k("v_and_b32", t1, 3, "v0")
    k("v_mul_u32_u24", vq, RP, t0)
    k("v_lshl_add_u32", vq, t1, 6, vq)
    PS = HF
    for w in range(4):
        for c in range(4):
            k("ds_read_b128", PS[w][c], vq, mod=f"offset:{w * G2_PART + c * 16}")
    vyr = k.v()
    k("v_mul_u32_u24", vyr, 16 * YP, t1)
    k("v_lshl_add_u32", vyr, t0, 1, vyr)
    k("v_add_u32", vyr, G2_Y, vyr)
    YVl = [WF[0][e >> 2][e & 3] for e in range(16)]
    class _Y:
        def __getitem__(self, e):
            return YVl[e]
    YV = _Y()
    for e in range(16):
        k("ds_read_u16", YV[e], vyr, mod=f"offset:{e * YP}")
    k.waitcnt(lgkm=0)
    smask = k.s(); snl = k.s()
    k("s_mov_b32", smask, "0xffff0000")
    k("s_mov_b32", snl, fl(NLOG2E))
    OUT = EY
    f = [WF[1][0][r] for r in range(4)]; g = [WF[1][1][r] for r in range(4)]; a = [WF[1][2][r] for r in range(4)]; b = [WF[1][3][r] for r in range(4)]

    def unpack(dst2, src):
        k("v_lshlrev_b32", dst2[0], 16, src)
        k("v_and_b32", dst2[1], smask, src)

    for c in range(4):
        for r in range(4):
            k("v_add_f32", f[r], PS[0][c][r], PS[1][c][r])
            k("v_add_f32", g[r], PS[2][c][r], PS[3][c][r])
        for r in range(4):
            k("v_add_f32", f[r], f[r], g[r])
        for p in range(2):
            k("v_cvt_pk_bf16_f32", f[2 * p + 1], f[2 * p], f[2 * p + 1])
            unpack(f[2 * p:2 * p + 2], f[2 * p + 1])
        for r in range(4):
            k("v_mul_f32", g[r], snl, f[r])
        for r in range(4):
            k("v_exp_f32", g[r], g[r])
        for r in range(4):
            k("v_add_f32", g[r], 1.0, g[r])
        for r in range(4):
            k("v_rcp_f32", g[r], g[r])
        for r in range(4):
            k("v_mul_f32", g[r], g[r], f[r])
        for p in range(2):
            k("v_cvt_pk_bf16_f32", g[2 * p + 1], g[2 * p], g[2 * p + 1])
            unpack(g[2 * p:2 * p + 2], g[2 * p + 1])
        for p in range(2):
            unpack(a[2 * p:2 * p + 2], EN[2 * c + p])
            unpack(b[2 * p:2 * p + 2], ED[2 * c + p])
        for r in range(4):
            k("v_mul_f32", a[r], a[r], b[r])
        for p in range(2):
            k("v_cvt_pk_bf16_f32", a[2 * p + 1], a[2 * p], a[2 * p + 1])
            unpack(a[2 * p:2 * p + 2], a[2 * p + 1])
        for r in range(4):
            k("v_lshlrev_b32", b[r], 16, YV[4 * c + r])
        for r in range(4):
            k("v_add_f32", a[r], a[r], b[r])
        for p in range(2):
            k("v_cvt_pk_bf16_f32", a[2 * p + 1], a[2 * p], a[2 * p + 1])
            unpack(a[2 * p:2 * p + 2], a[2 * p + 1])
        for r in range(4):
            k("v_mul_f32", a[r], a[r], g[r])
        for p in range(2):
            k("v_cvt_pk_bf16_f32", a[2 * p + 1], a[2 * p], a[2 * p + 1])
            unpack(a[2 * p:2 * p + 2], a[2 * p + 1])
        for p in range(2):
            unpack(b[2 * p:2 * p + 2], EX[2 * c + p])
        for r in range(4):
            k("v_add_f32", a[r], a[r], b[r])
        for p in range(2):
            k("v_cvt_pk_bf16_f32", OUT[2 * c + p], a[2 * p], a[2 * p + 1])
    k("buffer_store_dwordx4", OUT[0:4], ve, so, 0, mod="offen")
    k("buffer_store_dwordx4", OUT[4:8], ve, so, 0, mod="offen offset:16")


def gen_k4(stamps=False):
    k = Asm()
    k.reset_regs(v0=1, s0=4)
    if stamps:
        k.stamp_init(9)
    k.stamp()
    name = "k4_kernel"
    k("s_cmp_ge_u32", "s2", "256")
    k("s_cbranch_scc1", "K4_END")
    ptr = load_kernargs(k)
    lane = k.v(); wv = k.v(); swave = k.s()
    k("v_and_b32", lane, 63, "v0")
    k("v_lshrrev_b32", wv, 6, "v0")
    k("v_readfirstlane_b32", swave, wv)
    k.waitcnt(lgkm=0)
    k.stamp()
    swg = k.s()
    k("s_mov_b32", swg, "s2")
    gemm2_body(k, ptr, swg, lane, wv, swave)
    k.stamp()
    k.waitcnt(vm=0)
    k.stamp()
    k.stamp_dump(ptr["dbg"], 5)
    k.label("K4_END")
    k("s_endpgm")
    return name, k, dict(grid=256, block=256, lds=G2_LDS)
```

```python
from build import build
import k1c, k23, k4, sys, os
st = len(sys.argv) > 2
hilo = not os.environ.get("NOLO")
build([k1c.gen_k1c(stamps=st), k23.gen_k23b(stamps=st, hilo=hilo), k4.gen_k4(stamps=st)], sys.argv[1])
```

```python
from asmgen import *
from k1 import *

K1B_LDS = 8 * LN_PITCH + 16384


def gen_k1d(hilo=True, stamps=False):
    k = Asm()
    k.reset_regs(v0=1, s0=4)
    name = "k1_kernel"
    if stamps:
        k.stamp_init(6)
    k.stamp()
    k("s_cmp_ge_u32", "s2", "256")
    k("s_cbranch_scc1", "K1_END")
    ptr = load_kernargs(k)
    lane = k.v(); wv = k.v(); swave = k.s()
    k("v_and_b32", lane, 63, "v0")
    k("v_lshrrev_b32", wv, 6, "v0")
    k("v_readfirstlane_b32", swave, wv)
    i16 = k.v(); q = k.v()
    k("v_and_b32", i16, 15, lane)
    k("v_lshrrev_b32", q, 4, lane)
    voff = k.v()
    k("v_lshlrev_b32", voff, 4, lane)
    k.waitcnt(lgkm=0)
    st = k.s()
    sx = k.s(4)
    k.srd(sx, ptr["u"], L * D * 2)
    srow = k.s()
    k("s_lshl_b32", srow, "s2", 13)
    k("s_lshl_b32", st, swave, 11)
    k("s_add_u32", srow, srow, st)
    X = [k.v(4) for _ in range(2)]
    for r in range(2):
        k("buffer_load_dwordx4", X[r], voff, sx, srow, mod=f"offen offset:{r * 1024}")
    sd = k.s(); shw = k.s()
    k("s_lshl_b32", sd, "s2", 1)
    k("s_lshr_b32", st, swave, 1)
    k("s_add_u32", sd, sd, st)
    k("s_and_b32", shw, swave, 1)
    soff = k.s()
    k("s_lshl_b32", soff, sd, 8)
    k("s_lshl_b32", st, shw, 7)
    k("s_add_u32", soff, soff, st)
    v2 = k.v()
    k("v_lshlrev_b32", v2, 1, lane)
    PAR = {}
    stmp = k.s(4)
    for nm in ("lar", "ai", "cr", "ci"):
        k.srd(stmp, ptr[nm], D * N * 2)
        PAR[nm] = k.v()
        k("buffer_load_ushort", PAR[nm], v2, stmp, soff, mod="offen")
    vz = k.v()
    k("v_mov_b32", vz, 0)
    ldt = k.v()
    k.srd(stmp, ptr["ldt"], D * 2)
    k("s_lshl_b32", st, sd, 1)
    k("buffer_load_ushort", ldt, vz, stmp, st, mod="offen")
    spf = k.s(4)
    k("s_cmp_lt_u32", swave, 2)
    k("s_cselect_b32", spf[0], ptr["wg"][0], ptr["wu"][0])
    k("s_cselect_b32", spf[1], ptr["wg"][1], ptr["wu"][1])
    k("s_and_b32", spf[1], spf[1], "0xffff")
    k("s_mov_b32", spf[2], str(D * F * 2))
    k("s_mov_b32", spf[3], "0x00020000")
    spo = k.s(); sp2 = k.s()
    k("s_and_b32", spo, "s2", 7)
    k("s_lshl_b32", sp2, shw, 3)
    k("s_add_u32", spo, spo, sp2)
    k("s_mul_i32", spo, spo, 224)
    k("s_lshr_b32", sp2, "s2", 3)
    k("s_mul_i32", sp2, sp2, 16 * 3584)
    k("s_add_u32", spo, spo, sp2)
    vpf = k.v(); vpd = k.v(4)
    k("v_min_u32", vpf, 13, i16)
    k("v_lshlrev_b32", vpf, 4, vpf)
    k("v_mul_u32_u24", vpd[0], 3584, q)
    k("v_add_u32", vpf, vpf, vpd[0])
    for j in range(4):
        k("buffer_load_dwordx4", vpd, vpf, spf, spo, mod="offen")
        if j < 3:
            k("s_add_u32", spo, spo, 4 * 3584)
    m0 = k.mark()
    sxn = ws_srd(k, ptr, WS_XN, L * D * 2)
    sxt = ws_srd(k, ptr, WS_XNT, D * XT_PITCH)
    sones = k.s(); smask = k.s()
    k("s_mov_b32", sones, "0x3f803f80")
    k("s_mov_b32", smask, "0xffff0000")
    S = [k.v() for _ in range(2)]; T = [k.v() for _ in range(2)]
    for r in range(2):
        k.waitcnt(vm=10 - r)
        k("v_dot2_f32_bf16", S[r], X[r][0], sones, 0)
        for j in range(1, 4):
            k("v_dot2_f32_bf16", S[r], X[r][j], sones, S[r])
    reduce64_sum(k, S, T)
    mean = S
    for r in range(2):
        k("v_mul_f32", mean[r], fl(1.0 / 512), S[r])
    Fv = [k.v(8) for _ in range(2)]
    SS = [k.v() for _ in range(2)]
    T2 = [k.v() for _ in range(2)]
    for r in range(2):
        for j in range(4):
            k("v_lshlrev_b32", Fv[r][2 * j], 16, X[r][j])
            k("v_and_b32", Fv[r][2 * j + 1], smask, X[r][j])
    for j in range(0, 8, 2):
        for r in range(2):
            k("v_sub_f32", T[r], Fv[r][j], mean[r])
            k("v_sub_f32", T2[r], Fv[r][j + 1], mean[r])
        for r in range(2):
            if j == 0:
                k("v_mul_f32", SS[r], T[r], T[r])
            else:
                k("v_fma_f32", SS[r], T[r], T[r], SS[r])
        for r in range(2):
            k("v_fma_f32", SS[r], T2[r], T2[r], SS[r])
    reduce64_sum(k, SS, T)
    den = SS
    rc = [k.v() for _ in range(2)]
    for r in range(2):
        k("v_mul_f32", den[r], fl(1.0 / 512), SS[r])
    for r in range(2):
        bf16r(k, den[r], den[r])
    for r in range(2):
        k("v_add_f32", den[r], fl(1e-5), den[r])
    for r in range(2):
        bf16r(k, den[r], den[r])
    for r in range(2):
        k("v_sqrt_f32", den[r], den[r])
    for r in range(2):
        bf16r(k, den[r], den[r])
    for r in range(2):
        k("v_rcp_f32", rc[r], den[r])
    for r in range(2):
        bf16r(k, mean[r], mean[r])
    vlds = k.v()
    k("v_mul_u32_u24", vlds, LN_PITCH * 2, wv)
    k("v_add_u32", vlds, vlds, voff)
    H = k.v(4)
    a0, a1, q0, q1, e0, e1 = [k.v() for _ in range(6)]
    for r in range(2):
        O = X[r]
        for j in range(4):
            k("v_sub_f32", a0, Fv[r][2 * j], mean[r])
            k("v_sub_f32", a1, Fv[r][2 * j + 1], mean[r])
            k("v_cvt_pk_bf16_f32", a1, a0, a1)
            k("v_lshlrev_b32", a0, 16, a1)
            k("v_and_b32", a1, smask, a1)
            k("v_mul_f32", q0, a0, rc[r])
            k("v_mul_f32", q1, a1, rc[r])
            k("v_fma_f32", e0, neg(q0), den[r], a0)
            k("v_fma_f32", e1, neg(q1), den[r], a1)
            k("v_fma_f32", q0, e0, rc[r], q0)
            k("v_fma_f32", q1, e1, rc[r], q1)
            k("v_cvt_pk_bf16_f32", O[j], q0, q1)
            k("v_lshlrev_b32", q0, 16, O[j])
            k("v_and_b32", q1, smask, O[j])
            k("v_cvt_pkrtz_f16_f32", H[j], q0, q1)
        k("buffer_store_dwordx4", O, voff, sxn, srow, mod=f"offen offset:{r * 1024}")
        k("ds_write_b128", vlds, H, mod=f"offset:{r * LN_PITCH}")
    k.waitcnt(lgkm=0)
    k("s_barrier")
    vrd = k.v(); vst = k.v(); t0 = k.v(); t1 = k.v()
    k("v_lshrrev_b32", t0, 2, i16)
    k("v_mul_u32_u24", vrd, LN_PITCH, t0)
    k("v_and_b32", t0, 3, i16)
    k("v_lshl_add_u32", vrd, t0, 3, vrd)
    k("v_lshl_add_u32", t1, wv, 3, q)
    k("v_lshl_add_u32", vrd, t1, 5, vrd)
    k("v_lshl_add_u32", vst, t1, 4, i16)
    k("v_mul_u32_u24", vst, XT_PITCH, vst)
    sl0 = k.s()
    k("s_lshl_b32", sl0, "s2", 4)
    k("s_add_u32", sl0, sl0, 64)
    sl1 = k.s()
    k("s_add_u32", sl1, sl0, 64 * XT_PITCH)
    TT = [k.v(4) for _ in range(2)]
    for it in range(2):
        k("ds_read_b64_tr_b16", TT[it][0:2], vrd, mod=f"offset:{it * 128}")
        k("ds_read_b64_tr_b16", TT[it][2:4], vrd, mod=f"offset:{it * 128 + 4 * LN_PITCH}")
    zz = k.v(4)
    for j in range(4):
        k("v_mov_b32", zz[j], 0)
    vzp = k.v()
    k("v_lshrrev_b32", vzp, 2, "v0")
    k("v_mul_u32_u24", vzp, XT_PITCH, vzp)
    k("v_and_b32", t0, 3, "v0")
    k("v_lshl_add_u32", vzp, t0, 4, vzp)
    szp = k.s()
    k("s_mul_i32", szp, "s2", 2 * XT_PITCH)
    sex = k.s(2)
    k("v_cmp_gt_u32", "vcc", 8, "v0")
    k("s_and_saveexec_b64", sex, "vcc")
    k("s_cbranch_execz", "K1_NOZ")
    k("buffer_store_dwordx4", zz, vzp, sxt, szp, mod="offen")
    k.label("K1_NOZ")
    k("s_mov_b64", "exec", sex)
    k.waitcnt(lgkm=0)
    k("buffer_store_dwordx4", TT[0], vst, sxt, sl0, mod="offen")
    k("buffer_store_dwordx4", TT[1], vst, sxt, sl1, mod="offen")
    k.clear()
    k.release(m0)
    k.stamp()
    sc = {}
    for nm, val in (("l2e_hi", L2E_HI), ("l2e_lo", L2E_LO), ("ln2", LN2), ("i2p_hi", I2P_HI), ("i2p_lo", I2P_LO)):
        sc[nm] = k.s()
        k("s_mov_b32", sc[nm], fl(val))
    skh = ws_srd(k, ptr, WS_KH, D * L * 2)
    skl = ws_srd(k, ptr, WS_KL, D * L * 2)
    ski = ws_srd(k, ptr, WS_KINV, D * 4)
    pF = k.v()
    k("v_lshlrev_b32", pF, 3, i16)
    k("v_cvt_f32_u32", pF, pF)
    pR0 = k.v(); pR2 = k.v()
    t0, t1, t2 = k.v(), k.v(), k.v()
    k("v_lshlrev_b32", t0, 1, i16)
    k("v_add_u32", t0, 240, t0)
    k("v_and_b32", t1, 1, i16)
    k("v_lshlrev_b32", t1, 2, t1)
    k("v_bfe_u32", t2, i16, 1, 1)
    k("v_lshl_add_u32", t1, t2, 8, t1)
    k("v_add_u32", t1, 512, t1)
    k("v_cmp_gt_u32", "vcc", 8, i16)
    k("v_cndmask_b32", pR0, t0, i16, "vcc")
    k("v_cmp_gt_u32", "vcc", 12, i16)
    k("v_cndmask_b32", pR0, t1, pR0, "vcc")
    k("v_lshlrev_b32", pR2, 7, i16)
    k("v_add_u32", pR2, 1024, pR2)
    k("v_cvt_f32_u32", pR0, pR0)
    k("v_cvt_f32_u32", pR2, pR2)
    dt = k.v(); ndl = k.v(); dt2 = k.v()
    k.waitcnt(vm=4)
    k("v_lshlrev_b32", ldt, 16, ldt)
    exp_precise(k, dt, ldt, t0, t1, sc)
    bf16r(k, dt, dt)
    k("v_mul_f32", ndl, sc["l2e_hi"], dt)
    k("v_sub_f32", ndl, 0, ndl)
    k("v_add_f32", dt2, dt, dt)
    for nm in ("lar", "ai", "cr", "ci"):
        k("v_lshlrev_b32", PAR[nm], 16, PAR[nm])
    LP = dict(ar2=k.v(), whi=k.v(), wlo=k.v(), cr=PAR["cr"], ci=PAR["ci"], gr=k.v(), gi=k.v())
    exp_precise(k, LP["ar2"], PAR["lar"], t0, t1, sc)
    bf16r(k, LP["ar2"], LP["ar2"])
    k("v_mul_f32", LP["ar2"], LP["ar2"], ndl)
    ai = PAR["ai"]
    k("v_mul_f32", ai, ai, dt)
    k("v_mul_f32", LP["whi"], sc["i2p_hi"], ai)
    k("v_fma_f32", LP["wlo"], ai, sc["i2p_hi"], neg(LP["whi"]))
    k("v_fma_f32", LP["wlo"], ai, sc["i2p_lo"], LP["wlo"])
    k("v_mul_f32", LP["cr"], LP["cr"], dt2)
    k("v_mul_f32", LP["ci"], LP["ci"], dt2)
    s128 = k.s()
    k("s_mov_b32", s128, fl(128.0))
    k("v_mul_f32", t0, s128, LP["ar2"])
    k("v_exp_f32", t0, t0)
    k("v_mul_f32", t1, s128, LP["whi"])
    k("v_fract_f32", t1, t1)
    k("v_fma_f32", t1, LP["wlo"], s128, t1)
    k("v_sin_f32", LP["gi"], t1)
    k("v_cos_f32", LP["gr"], t1)
    k("v_mul_f32", LP["gi"], LP["gi"], t0)
    k("v_mul_f32", LP["gr"], LP["gr"], t0)
    Dacc = [k.v(4) for _ in range(3)]
    B1, B2 = k.v(), k.v()
    mag = [k.v() for _ in range(3)]; rv = [k.v() for _ in range(3)]; tt = [k.v() for _ in range(3)]
    Er = [k.v() for _ in range(4)]; Ei = [k.v() for _ in range(4)]
    PS = [pR0, pR2, pF]
    names = ("ar2", "whi", "wlo", "cr", "ci", "gr", "gi")
    PRM = [{nm: k.v() for nm in names} for _ in range(2)]

    def bcast(s):
        for nm in names:
            k("v_mov_b32_dpp", PRM[s & 1][nm], LP[nm], mod=f"row_newbcast:{s} row_mask:0xf bank_mask:0xf")
    bcast(0)
    for s in range(16):
        P = PRM[s & 1]
        for j in range(3):
            k("v_mul_f32", mag[j], P["ar2"], PS[j])
        for j in range(3):
            k("v_mul_f32", rv[j], P["whi"], PS[j])
        for j in range(3):
            k("v_exp_f32", mag[j], mag[j])
        for j in range(3):
            k("v_fma_f32", tt[j], P["whi"], PS[j], neg(rv[j]))
        for j in range(3):
            k("v_fma_f32", tt[j], P["wlo"], PS[j], tt[j])
        for j in range(3):
            k("v_fract_f32", rv[j], rv[j])
        for j in range(3):
            k("v_add_f32", rv[j], rv[j], tt[j])
        for j in range(3):
            k("v_sin_f32", Ei[j], rv[j])
        for j in range(3):
            k("v_cos_f32", Er[j], rv[j])
        if s < 15:
            bcast(s + 1)
        for j in (2, 0, 1):
            k("v_mul_f32", Ei[j], mag[j], Ei[j])
            k("v_mul_f32", Er[j], mag[j], Er[j])
        k("v_mul_f32", B1, P["ci"], Ei[2])
        k("v_mul_f32", B2, P["cr"], Ei[2])
        k("v_mul_f32", Er[3], P["gi"], Ei[0])
        k("v_mul_f32", Ei[3], P["gr"], Ei[0])
        k("v_fma_f32", B1, P["cr"], Er[2], neg(B1))
        k("v_fma_f32", B2, neg(P["ci"]), Er[2], neg(B2))
        k("v_fma_f32", Er[3], P["gr"], Er[0], neg(Er[3]))
        k("v_fma_f32", Ei[3], P["gi"], Er[0], Ei[3])
        for r, j in ((0, 0), (1, 3), (2, 1)):
            k("v_mfma_f32_16x16x4_f32", Dacc[r], Er[j], B1, Dacc[r] if s else 0)
        for r, j in ((0, 0), (1, 3), (2, 1)):
            k("v_mfma_f32_16x16x4_f32", Dacc[r], Ei[j], B2, Dacc[r])
    k.stamp()
    LB = 8 * LN_PITCH
    sreg = k.s()
    k("s_lshr_b32", sreg, swave, 1)
    k("s_lshl_b32", sreg, sreg, 13)
    k("s_add_u32", sreg, sreg, LB)
    vb = k.v()
    k("v_mul_u32_u24", vb, 48, lane)
    k("v_add_u32", vb, sreg, vb)
    k("s_cmp_eq_u32", shw, 0)
    k.clear()
    k("s_cbranch_scc1", "K1_KG_A")
    for r in range(3):
        k("ds_write_b128", vb, Dacc[r], mod=f"offset:{16 * r}")
    k.waitcnt(lgkm=0)
    k("s_barrier")
    k("s_branch", "K1_KG_B")
    k.label("K1_KG_A")
    k("s_barrier")
    P2 = [k.v(4) for _ in range(3)]
    for r in range(3):
        k("ds_read_b128", P2[r], vb, mod=f"offset:{16 * r}")
    k.waitcnt(lgkm=0)
    for r in range(3):
        for j in range(4):
            k("v_add_f32", Dacc[r][j], Dacc[r][j], P2[r][j])
    mx = k.v(); mt = k.v()
    k("v_max3_f32", mx, absm(Dacc[0][0]), absm(Dacc[0][1]), absm(Dacc[0][2]))
    vals = [Dacc[r][j] for r in range(3) for j in range(4)][3:]
    for a in range(0, 8, 2):
        k("v_max3_f32", mx, absm(vals[a]), absm(vals[a + 1]), mx)
    k("v_max_f32", mx, absm(vals[8]), mx)
    reduce64_sum(k, [mx], [mt], op="v_max_f32")
    scl = k.v(); inv = k.v()
    k("v_bfe_u32", t0, mx, 23, 8)
    k("v_sub_u32", t1, 268, t0)
    k("v_mov_b32", t2, 240)
    k("v_med3_i32", t1, t1, 14, t2)
    k("v_lshlrev_b32", scl, 23, t1)
    k("v_sub_u32", t1, 254, t1)
    k("v_lshlrev_b32", inv, 23, t1)
    k("s_lshl_b32", st, sd, 2)
    k("buffer_store_dword", inv, vz, ski, st, mod="offen")
    ub = k.v(); uadd = k.v()
    k("v_lshlrev_b32", t0, 2, q)
    k("v_lshl_add_u32", t0, i16, 3, t0)
    k("v_lshlrev_b32", t1, 2, i16)
    k("v_add_u32", t1, 256, t1)
    k("v_mov_b32", t2, 384)
    k("v_lshl_add_u32", t2, i16, 1, t2)
    k("v_cmp_gt_u32", "vcc", 2, q)
    k("v_cndmask_b32", ub, t1, t0, "vcc")
    k("v_mov_b32", uadd, 64)
    k("v_mov_b32", t0, 128)
    k("v_cndmask_b32", uadd, uadd, t0, "vcc")
    k("v_cmp_gt_u32", "vcc", 3, q)
    k("v_cndmask_b32", ub, t2, ub, "vcc")
    k("v_mov_b32", t0, 32)
    k("v_cndmask_b32", uadd, t0, uadd, "vcc")
    jx = k.v()
    k("v_mov_b32", t0, 62)
    k("v_mov_b32", t1, 0)
    k("v_cndmask_b32", jx, t0, t1, "vcc")
    k("v_lshlrev_b32", ub, 2, ub)
    k("v_add_u32", ub, sreg, ub)
    k("v_lshlrev_b32", uadd, 2, uadd)
    k("v_lshlrev_b32", jx, 2, jx)
    a_t0lo = ub
    a_t0hi = k.v(); a_t1lo = k.v(); a_t1hi = k.v(); a_t2 = k.v()
    k("v_add_u32", a_t0hi, ub, jx)
    k("v_add_u32", a_t1lo, ub, uadd)
    k("v_add_u32", a_t1hi, a_t1lo, jx)
    k("v_lshl_add_u32", a_t2, q, 6, i16)
    k("v_lshlrev_b32", a_t2, 2, a_t2)
    k("v_add_u32", a_t2, sreg, a_t2)
    hv = [k.v() for _ in range(4)]; lv = [k.v() for _ in range(4)]; tv = [k.v() for _ in range(4)]
    for r in range(3):
        for j in range(4):
            k("v_mul_f32", tv[j], Dacc[r][j], scl)
        for j in range(4):
            k("v_cvt_f16_f32", hv[j], tv[j])
        for j in range(4):
            k("v_cvt_f32_f16", lv[j], hv[j])
        for j in range(4):
            k("v_sub_f32", lv[j], tv[j], lv[j])
        for j in range(4):
            k("v_cvt_f16_f32", lv[j], lv[j])
        for j in range(4):
            k("v_pack_b32_f16", hv[j], hv[j], lv[j])
        for j in range(4):
            if r < 2:
                addr = ((a_t0lo, a_t0hi), (a_t1lo, a_t1hi))[r][j >> 1]
                off = 4 * j
            else:
                addr = a_t2
                off = 2048 + 64 * j
            k("ds_write_b32", addr, hv[j], mod=f"offset:{3072 + off}")
    k.waitcnt(lgkm=0)
    k.clear()
    k.label("K1_KG_B")
    k("s_barrier")
    vl = k.v()
    k("v_lshlrev_b32", vl, 4, lane)
    k("s_lshl_b32", st, shw, 10)
    k("v_add_u32", vl, st, vl)
    OH = k.v(8); OL = k.v(8)
    RH = k.v(16)
    ua = [k.v() for _ in range(4)]; ut = [k.v() for _ in range(4)]
    sbias = k.s()
    k("s_sub_u32", sbias, sreg, 4 * 17024 - 3072)
    sr3 = k.s()
    k("s_add_u32", sr3, sreg, 3072)
    for e0_ in range(0, 16, 4):
        for j in range(4):
            k("v_add_u32", ut[j], e0_ + j, vl)
        for j in range(4):
            k("v_cvt_f32_u32", ua[j], ut[j])
        for j in range(4):
            k("v_cvt_pk_bf16_f32", ua[j], ua[j], ua[j])
        for j in range(4):
            k("v_and_b32", ua[j], "0xffff", ua[j])
        for j in range(4):
            k("v_lshl_add_u32", ua[j], ua[j], 2, sbias)
            k("v_lshl_add_u32", tv[j], ut[j], 2, sr3)
        for j in range(4):
            k("v_cmp_gt_u32", "vcc", 128, ut[j])
            k("v_cndmask_b32", ua[j], ua[j], tv[j], "vcc")
        for j in range(4):
            e = e0_ + j
            pos = (e >> 3) * 8 + (7 - (e & 7))
            k("ds_read_b32", RH[pos], ua[j])
    k.waitcnt(lgkm=0)
    sperm_lo = k.s()
    k("s_mov_b32", sperm_lo, "0x05040100")
    for j in range(8):
        k("v_perm_b32", OH[j], RH[2 * j + 1], RH[2 * j], sperm_lo)
    vki = k.v(); vki2 = k.v()
    s78 = k.s()
    k("s_mov_b32", s78, "0x78")
    k("v_bfe_u32", vki, vl, 7, 2)
    k("v_lshlrev_b32", vki, 1, vki)
    k("v_lshrrev_b32", vki, vki, s78)
    k("v_and_b32", vki, 3, vki)
    k("v_bfe_u32", vki2, vl, 3, 2)
    k("v_xor_b32", vki, vki, vki2)
    k("v_xor_b32", vki2, 1, vki)
    k("v_lshrrev_b32", tv[0], 5, vl)
    k("v_lshlrev_b32", tv[0], 6, tv[0])
    k("v_lshl_add_u32", vki, vki, 4, tv[0])
    k("v_lshl_add_u32", vki2, vki2, 4, tv[0])
    k("s_lshl_b32", st, sd, 12)
    k("buffer_store_dwordx4", OH[0:4], vki, skh, st, mod="offen")
    k("buffer_store_dwordx4", OH[4:8], vki2, skh, st, mod="offen")
    k.stamp()
    k.waitcnt(vm=0)
    k.stamp()
    k.stamp_dump(ptr["dbg"], 100)
    k.label("K1_END")
    k("s_endpgm")
    return name, k, dict(grid=256, block=256, lds=K1B_LDS)
```

```python
import os
from asmgen import *
from k1 import *
import k2
from k2 import gemm1_body, G1_LDS

CPITCH = 4256
CV_BASE = G1_LDS
KI_BASE = CV_BASE + 4 * CPITCH
FL_BASE = KI_BASE + 2 * 5120
K23_LDS = FL_BASE + 64


def side_body(k, ptr, swg, lane, swave, hilo=True):
    nb = [1]

    def bar():
        assert nb[0] > 0
        k("s_barrier")
        nb[0] -= 1
    st = k.s()
    i16 = k.v(); q = k.v()
    k("v_and_b32", i16, 15, lane)
    k("v_lshrrev_b32", q, 4, lane)
    kg = q
    sd = k.s(); shw = k.s()
    k("s_lshl_b32", sd, swg, 1)
    k("s_lshr_b32", st, swave, 1)
    k("s_add_u32", sd, sd, st)
    k("s_and_b32", shw, swave, 1)
    sp = shw
    vfo = k.v(); vfp = k.v(); vft = k.v()
    k("s_lshl_b32", st, swave, 2)
    k("s_add_u32", st, st, FL_BASE)
    k("v_mov_b32", vfo, st)
    k("s_xor_b32", st, st, 4)
    k("v_mov_b32", vfp, st)
    k("v_mov_b32", vft, 0)
    k("ds_write_b32", vfo, vft)
    sfl = k.s()
    BAR_EARLY = True

    def signal(val):
        k.waitcnt(lgkm=0)
        k("v_mov_b32", vft, val)
        k("ds_write_b32", vfo, vft)

    def await_(val):
        lab = k.newlabel("SPIN")
        k.clear()
        k.label(lab)
        k("ds_read_b32", vft, vfp)
        k.waitcnt(lgkm=0)
        k("v_readfirstlane_b32", sfl, vft)
        k("s_cmp_lt_u32", sfl, val)
        k("s_cbranch_scc1", lab)
    vz = k.v()
    k("v_mov_b32", vz, 0)
    sxt = ws_srd(k, ptr, WS_XNT, D * XT_PITCH)
    sx = k.s(); sx4 = k.s()
    k("s_mul_i32", sx, sd, XT_PITCH)
    k("s_lshl_b32", st, sp, 3)
    k("s_add_u32", sx, sx, st)
    k("s_add_u32", sx4, sx, 4096)
    va = k.v()
    k("v_lshlrev_b32", va, 4, lane)
    W = [k.v(8) for _ in range(5)]
    for it in range(5):
        so = sx if it < 4 else sx4
        k("buffer_load_dwordx4", W[it][0:4], va, sxt, so, mod=f"offen offset:{(it & 3) * 1024}")
        k("buffer_load_dwordx4", W[it][4:8], va, sxt, so, mod=f"offen offset:{(it & 3) * 1024 + 16}")
    skh = ws_srd(k, ptr, WS_KH, D * L * 2)
    skv = ws_srd(k, ptr, WS_KINV, D * 4)
    ski = k.s()
    k("s_lshr_b32", ski, swave, 1)
    k("s_mul_i32", ski, ski, 5120)
    k("s_add_u32", ski, ski, KI_BASE)
    kinv = k.v()
    t0, t1 = k.v(), k.v()
    k("s_lshl_b32", st, sd, 2)
    k("buffer_load_dword", kinv, vz, skv, st, mod="offen")
    m2 = k.mark()
    KT = [k.v(4) for _ in range(2)]
    sk0 = k.s()
    k("s_lshl_b32", sk0, sd, 12)
    k("s_lshl_b32", st, shw, 11)
    k("s_add_u32", sk0, sk0, st)
    for j in range(2):
        k("buffer_load_dwordx4", KT[j], va, skh, sk0, mod=f"offen offset:{j * 1024}")
    zz = k.v(4)
    for j in range(4):
        k("v_mov_b32", zz[j], 0)
    vkz = k.v(); vkw = k.v()
    k("v_and_b32", vkz, 31, lane)
    k("v_lshlrev_b32", vkz, 4, vkz)
    k("s_lshl_b32", st, shw, 9)
    k("s_add_u32", st, st, ski)
    k("v_add_u32", vkz, st, vkz)
    k("ds_write_b128", vkz, zz)
    k("s_lshl_b32", st, shw, 11)
    k("s_add_u32", st, st, ski)
    k("v_add_u32", vkw, st, va)
    k.waitcnt(lgkm=0)
    bar()
    k.waitcnt(vm=0)
    for j in range(2):
        k("ds_write_b128", vkw, KT[j], mod=f"offset:{1024 + j * 1024}")
    k.release(m2)
    k.stamp()
    lab = k.newlabel("WG")
    vgc = k.v()
    k("v_mov_b32", vgc, FL_BASE + 32)
    k.clear()
    k.label(lab)
    k("s_sleep", 1)
    k("ds_read_b32", vft, vgc)
    k.waitcnt(lgkm=0)
    k("v_readfirstlane_b32", sfl, vft)
    k("s_cmp_lt_u32", sfl, 32)
    k("s_cbranch_scc1", lab)
    m3 = k.mark()
    slb = k.s()
    k("s_mul_i32", slb, swave, 4 * CPITCH)
    vw = k.v()
    k("v_add_u32", vw, slb, va)
    T1 = k.v(4); T2 = k.v(4); T3 = k.v(4)
    sex = k.s(2)
    k.waitcnt(vm=0)
    for it in range(5):
        w = W[it]
        if it == 4:
            k("v_cmp_gt_u32", "vcc", 4, lane)
            k("s_and_saveexec_b64", sex, "vcc")
        for j in range(4):
            k("v_alignbit_b32", T1[j], w[j + 1], w[j], 16)
            k("v_mov_b32", T2[j], w[j + 1])
            k("v_alignbit_b32", T3[j], w[j + 2], w[j + 1], 16)
        k("ds_write_b128", vw, w[0:4], mod=f"offset:{it * 1024}")
        k("ds_write_b128", vw, T1, mod=f"offset:{it * 1024 + CPITCH}")
        k("ds_write_b128", vw, T2, mod=f"offset:{it * 1024 + 2 * CPITCH}")
        k("ds_write_b128", vw, T3, mod=f"offset:{it * 1024 + 3 * CPITCH}")
        if it == 4:
            k("s_mov_b64", "exec", sex)
    k.release(m3)
    signal(3)
    await_(3)
    k.stamp()
    syt = ws_srd(k, ptr, WS_YT, D * L * 2)
    vr = k.v()
    k("v_add_u32", t0, 1, i16)
    k("v_and_b32", t1, 7, t0)
    k("v_mul_u32_u24", vr, CPITCH, t1)
    k("v_lshrrev_b32", t0, 3, t0)
    k("v_sub_u32", t0, t0, kg)
    k("v_add_u32", t0, 3, t0)
    k("v_lshl_add_u32", vr, t0, 4, vr)
    k("s_lshr_b32", st, swave, 1)
    k("s_mul_i32", st, st, 8 * CPITCH)
    sb2 = k.s()
    k("s_lshl_b32", sb2, sp, 5)
    k("s_add_u32", st, st, sb2)
    k("v_add_u32", vr, st, vr)
    vkrs = [k.v() for _ in range(3)]
    vm = k.v(); vm2 = k.v()
    s78 = k.s()
    k("s_mov_b32", s78, "0x78")
    Y = [k.v(4) for _ in range(4)]
    NBF = 3
    KF = [[k.v(4) for _ in range(4)] for _ in range(NBF)]
    A = [[k.v(4) for _ in range(4)] for _ in range(NBF)]

    def rd(c0):
        vkr = vkrs[c0 % 3]
        k("v_add_u32", vm, 16 - c0, i16)
        k("v_bfe_u32", vm2, vm, 2, 2)
        k("v_lshlrev_b32", vm2, 1, vm2)
        k("v_lshrrev_b32", vm2, vm2, s78)
        k("v_and_b32", vm2, 3, vm2)
        k("v_xor_b32", vm2, vm2, kg)
        k("v_lshlrev_b32", vm, 6, vm)
        k("v_lshl_add_u32", vkr, vm2, 4, vm)
        k("v_add_u32", vkr, ski, vkr)
        for t in range(4):
            k("ds_read_b128", KF[c0 % NBF][t], vkr, mod=f"offset:{1024 * t}")
        for c1 in range(4):
            k("ds_read_b128", A[c0 % NBF][c1], vr, mod=f"offset:{64 * (16 * c1 + c0)}")
    swd = k.s(4); k.srd(swd, ptr["wd"], F * D * 2)
    swo = k.s()
    k("s_lshr_b32", swo, swg, 3)
    k("s_lshl_b32", swo, swo, 2)
    k("s_add_u32", swo, swo, swave)
    k("s_mul_i32", swo, swo, 14 * 1024)
    vpd = k.v(4)
    rd(0)
    for c0 in range(16):
        if c0 == 0:
            rd(1)
        if c0 < 15:
            k.waitcnt(lgkm=8)
        else:
            k.waitcnt(lgkm=0)
        if c0 + 2 < 16:
            rd(c0 + 2)
        for c1 in range(4):
            for T in range(c1, 4):
                first = (c0 == 0 and c1 == 0)
                k("v_mfma_f32_16x16x32_f16", Y[T], A[c0 % NBF][c1], KF[c0 % NBF][T - c1], 0 if first else Y[T])
        if c0 < 14:
            k("buffer_load_dwordx4", vpd, va, swd, swo, mod="offen")
            k("s_add_u32", swo, swo, 1024)
    vo = k.v()
    k("v_lshlrev_b32", vo, 6, i16)
    k("v_lshl_add_u32", vo, kg, 3, vo)
    k("v_add_u32", vo, sb2, vo)
    sk = k.s()
    k("s_lshl_b32", sk, sd, 12)
    O = [k.v(2) for _ in range(4)]
    for T in range(4):
        for r in range(4):
            k("v_mul_f32", Y[T][r], Y[T][r], kinv)
        k("v_cvt_pk_bf16_f32", O[T][0], Y[T][0], Y[T][1])
        k("v_cvt_pk_bf16_f32", O[T][1], Y[T][2], Y[T][3])
        k("buffer_store_dwordx2", O[T], vo, syt, sk, mod=f"offen offset:{T * 1024}")


def gen_k23c(stamps=False, hilo=True):
    k = Asm()
    k.reset_regs(v0=1, s0=4)
    if stamps:
        k.stamp_init(8)
    k.stamp()
    name = "k23_kernel"
    k("s_cmp_ge_u32", "s2", "256")
    k("s_cbranch_scc1", "K23_END")
    ptr = load_kernargs(k)
    lane = k.v(); wv = k.v(); swave = k.s()
    k("v_and_b32", lane, 63, "v0")
    k("v_lshrrev_b32", wv, 6, "v0")
    k("v_readfirstlane_b32", swave, wv)
    k.waitcnt(lgkm=0)
    swg = k.s()
    k("s_mov_b32", swg, "s2")
    k("s_cmp_ge_u32", swave, 4)
    k.clear()
    k("s_cbranch_scc1", "K23_SIDE")
    mk = k.mark()
    side_st = os.environ.get("SIDE_ST")
    sv = k.stamps if stamps else None
    if side_st:
        k.stamps = None
    k("s_setprio", os.environ.get("GPRIO", "0"))
    gemm1_body(k, ptr, swg, lane, wv, swave, cnt_addr=FL_BASE + 32)
    k.stamp()
    k.waitcnt(vm=0)
    k.stamp()
    k.stamp_dump(ptr["dbg"], 5)
    k("s_endpgm")
    k.release(mk)
    k.label("K23_SIDE")
    k.stamps = sv if (side_st and stamps) else None
    k.nstamp = 1
    k("s_sub_u32", swave, swave, 4)
    k("s_setprio", os.environ.get("SPRIO", "3"))
    side_body(k, ptr, swg, lane, swave, hilo)
    if side_st and stamps:
        k.stamp()
        k("v_subrev_u32", "v0", 256, "v0") if False else k.raw("    v_subrev_u32 v0, 256, v0")
        k.stamp_dump(ptr["dbg"], 5)
    k.label("K23_END")
    k("s_endpgm")
    return name, k, dict(grid=256, block=512, lds=K23_LDS)
```

```python
import math, os
from asmgen import *
from k1 import *

G1_STAGE = 45056
G1_XOFF = 28672
G1_NB = 3
G1_LDS = G1_STAGE * G1_NB
GK1 = -2.0 * math.log2(math.e) * math.sqrt(2.0 / math.pi)
GK2 = GK1 * 0.044715


def gemm1_body(k, ptr, swg, lane, wv, swave, cnt_addr=None):
    sxn = ws_srd(k, ptr, WS_XN, L * D * 2)
    sh = ws_srd(k, ptr, WS_H, L * F * 2)
    smat = k.s(); sw1 = k.s(); st = k.s()
    k("s_lshr_b32", smat, swave, 1)
    k("s_and_b32", sw1, swave, 1)
    sW = k.s(4)
    k("s_cmp_eq_u32", smat, 0)
    k("s_cselect_b32", sW[0], ptr["wg"][0], ptr["wu"][0])
    k("s_cselect_b32", sW[1], ptr["wg"][1], ptr["wu"][1])
    k("s_and_b32", sW[1], sW[1], "0xffff")
    k("s_mov_b32", sW[2], str(D * F * 2))
    k("s_mov_b32", sW[3], "0x00020000")
    smt = k.s(); snt = k.s()
    k("s_lshr_b32", smt, swg, 4)
    k("s_and_b32", snt, swg, 15)
    sn0b = k.s()
    k("s_mul_i32", sn0b, snt, 224)
    i16 = k.v(); kg = k.v()
    k("v_and_b32", i16, 15, lane)
    k("v_lshrrev_b32", kg, 4, lane)
    vd = [k.v() for _ in range(7)]
    t0, t1, t2 = k.v(), k.v(), k.v()
    t3 = k.v(); smag = k.s()
    k("s_mov_b32", smag, 4682)
    for j in range(7):
        k("v_add_u32", t0, 64 * j, lane)
        k("v_mul_lo_u32", t1, t0, smag)
        k("v_lshrrev_b32", t1, 16, t1)
        k("v_mul_u32_u24", t2, 14, t1)
        k("v_sub_u32", t0, t0, t2)
        k("v_lshrrev_b32", t2, 1, t0)
        k("v_bfe_u32", t3, t1, 3, 1)
        k("v_mul_u32_u24", t3, 3, t3)
        k("v_add_u32", t2, t2, t3)
        k("v_subrev_u32", t3, 7, t2)
        k("v_cmp_le_u32", "vcc", 7, t2)
        k("v_cndmask_b32", t2, t2, t3, "vcc")
        k("v_and_b32", t0, 1, t0)
        k("v_lshlrev_b32", t0, 4, t0)
        k("v_lshl_add_u32", t0, t2, 5, t0)
        k("v_mul_u32_u24", t1, 3584, t1)
        k("v_add_u32", vd[j], t0, t1)
    sgo = k.s()
    k("s_mul_i32", sgo, sw1, 32 * 3584)
    k("s_add_u32", sgo, sgo, sn0b)
    slo = k.s()
    k("s_mul_i32", slo, swave, 7168)
    sso = k.s(); ssx = k.s()

    vdx = k.v()
    k("v_lshrrev_b32", t0, 3, lane)
    k("v_and_b32", t1, 7, lane)
    k("v_xor_b32", t1, t1, t0)
    k("v_lshlrev_b32", t1, 4, t1)
    k("v_lshl_add_u32", vdx, t0, 10, t1)
    srow = k.s()
    k("s_lshl_b32", srow, smt, 7)
    k("s_lshl_b32", st, swave, 5)
    k("s_add_u32", srow, srow, st)
    sxg = k.s()
    k("s_lshl_b32", sxg, srow, 10)
    sxl = k.s()
    k("s_lshl_b32", sxl, swave, 12)
    k("s_add_u32", sxl, sxl, G1_XOFF)

    def dma_list(stage):
        buf = stage % G1_NB
        out = []
        for j in range(7):
            def f(j=j):
                if j == 0:
                    k("s_add_u32", sso, sgo, str(stage * 64 * 3584))
                k("s_add_u32", "m0", slo, str(buf * G1_STAGE + j * 1024))
                k("buffer_load_dwordx4", vd[j], sW, sso, mod="offen lds")
            out.append(f)
        for jj in range(4):
            def g(jj=jj):
                k("s_add_u32", ssx, sxg, str(stage * 128 + jj * 8192))
                k("s_add_u32", "m0", sxl, str(buf * G1_STAGE + jj * 1024))
                k("buffer_load_dwordx4", vdx, sxn, ssx, mod="offen lds")
            out.insert(2 * jj + 1, g)
        return out

    def dma(stage):
        for f in dma_list(stage):
            f()

    dma(0)
    dma(1)
    vxr = [k.v(), k.v()]
    k("v_and_b32", t1, 7, i16)
    k("v_xor_b32", t1, t1, kg)
    k("v_lshlrev_b32", t0, 7, i16)
    k("v_add_u32", t0, sxl, t0)
    k("v_lshl_add_u32", vxr[0], t1, 4, t0)
    k("v_xor_b32", t1, 4, t1)
    k("v_lshl_add_u32", vxr[1], t1, 4, t0)
    vxr2 = [k.v(), k.v()]
    k("v_add_u32", vxr2[0], 65536, vxr[0])
    k("v_add_u32", vxr2[1], 65536, vxr[1])
    k("v_add_u32", t0, srow, i16)
    vh = [k.v(), k.v()]
    k("v_mul_u32_u24", t1, 3584, t0)
    k("v_lshl_add_u32", t1, kg, 3, t1)
    k("v_add_u32", vh[0], sn0b, t1)
    k("v_add_u32", vh[1], 16 * 3584, vh[0])
    va = [k.v() for _ in range(7)]
    rr = k.v()
    k("v_lshrrev_b32", rr, 2, i16)
    k("v_lshl_add_u32", t0, kg, 3, rr)
    k("v_mul_u32_u24", t0, 224, t0)
    k("v_and_b32", t1, 3, i16)
    k("v_lshl_add_u32", t0, t1, 3, t0)
    k("v_and_b32", t1, 1, kg)
    k("v_cmp_eq_u32", "vcc", 1, t1)
    for t in range(7):
        k("v_mov_b32", t1, t * 32)
        k("v_mov_b32", t2, ((t + 4) % 7) * 32)
        k("v_cndmask_b32", t1, t1, t2, "vcc")
        k("v_add_u32", va[t], t0, t1)
    vb = [k.v() for _ in range(7)]
    for t in range(7):
        k("v_add_u32", vb[t], 65536, va[t])
    ACC = [[[k.v(4) for _ in range(2)] for _ in range(7)] for _ in range(2)]
    if cnt_addr is not None:
        vcnt = k.v(); vone = k.v(); vcv = k.v(); scv = k.s()
        k("v_mov_b32", vcnt, cnt_addr)
        k("v_mov_b32", vone, 1)
        k("v_mov_b32", vcv, 0)
        k("ds_write_b32", vcnt, vcv)
        k.waitcnt(lgkm=0)
    R = 6
    WF = [k.v(4) for _ in range(R)]
    XF = [[k.v(4) for _ in range(2)] for _ in range(2)]
    items = [(ks, mat, t) for ks in range(2) for t in range(7) for mat in range(2)]
    for s in range(8):
        buf = s % G1_NB
        k.waitcnt(vm=11 if s < 7 else 0)
        if cnt_addr is None:
            k("s_barrier")
        else:
            if s == 0:
                k("s_barrier")
            else:
                k("s_mov_b64", "exec", 1)
                k("ds_add_u32", vcnt, vone)
                k("s_mov_b64", "exec", -1)
                lab = k.newlabel("GSPIN")
                k.clear()
                k.label(lab)
                k("ds_read_b32", vcv, vcnt)
                k.waitcnt(lgkm=0)
                k("v_readfirstlane_b32", scv, vcv)
                k("s_cmp_lt_u32", scv, 4 * s)
                k("s_cbranch_scc1", lab)
        if s in (0, 1, 4):
            k.stamp()
        pend = dma_list(s + 2) if s + 2 < 8 else []
        base = buf * G1_STAGE
        for ks in range(2):
            for mt in range(2):
                if base + mt * 2048 <= 65535:
                    k("ds_read_b128", XF[ks][mt], vxr[ks], mod=f"offset:{base + mt * 2048}")
                else:
                    k("ds_read_b128", XF[ks][mt], vxr2[ks], mod=f"offset:{base + mt * 2048 - 65536}")

        def rd(i):
            ks, mat, t = items[i]
            off = base + mat * 14336 + ks * 7168
            if off + 896 <= 65535:
                k("ds_read_b64_tr_b16", WF[i % R][0:2], va[t], mod=f"offset:{off}")
                k("ds_read_b64_tr_b16", WF[i % R][2:4], va[t], mod=f"offset:{off + 896}")
            else:
                k("ds_read_b64_tr_b16", WF[i % R][0:2], vb[t], mod=f"offset:{off - 65536}")
                k("ds_read_b64_tr_b16", WF[i % R][2:4], vb[t], mod=f"offset:{off + 896 - 65536}")
        for i in range(R - 1):
            rd(i)
        for i, (ks, mat, t) in enumerate(items):
            if i + R - 1 < len(items):
                rd(i + R - 1)
                k.waitcnt(lgkm=2 * (R - 1))
            else:
                k.waitcnt(lgkm=2 * (len(items) - 1 - i))
            for mt in range(2):
                first = (s == 0 and ks == 0)
                k("v_mfma_f32_16x16x32_bf16", ACC[mat][t][mt], WF[i % R], XF[ks][mt], 0 if first else ACC[mat][t][mt])
            if pend and (i % 2 == 0):
                pend.pop(0)()
    if cnt_addr is not None:
        k("s_mov_b64", "exec", 1)
        k("ds_add_u32", vcnt, vone)
        k("s_mov_b64", "exec", -1)
    if os.environ.get("EPRIO"):
        k("s_setprio", os.environ["EPRIO"])
    k.stamp()
    smask = k.s(); sk1 = k.s(2); sk2 = k.s(2)
    k("s_mov_b32", smask, "0xffff0000")
    for j in range(2):
        k("s_mov_b32", sk1[j], fl(GK1))
        k("s_mov_b32", sk2[j], fl(GK2))
    XG = [k.v(4) for _ in range(2)]; XU = [k.v(4) for _ in range(2)]; E = [k.v(4) for _ in range(2)]
    O = [k.v(2), k.v(2)]
    n = 0
    for mt in range(2):
        for t in range(7):
            G = ACC[0][t][mt]; U = ACC[1][t][mt]
            xg = XG[n & 1]; xu = XU[n & 1]; e = E[n & 1]
            for p in range(2):
                k("v_cvt_pk_bf16_f32", xg[2 * p + 1], G[2 * p], G[2 * p + 1])
                k("v_cvt_pk_bf16_f32", xu[2 * p + 1], U[2 * p], U[2 * p + 1])
            for p in range(2):
                k("v_lshlrev_b32", xg[2 * p], 16, xg[2 * p + 1])
                k("v_and_b32", xg[2 * p + 1], smask, xg[2 * p + 1])
            for p in range(2):
                k("v_pk_mul_f32", e[2 * p:2 * p + 2], xg[2 * p:2 * p + 2], xg[2 * p:2 * p + 2])
            for p in range(2):
                k("v_pk_mul_f32", e[2 * p:2 * p + 2], e[2 * p:2 * p + 2], sk2)
            for p in range(2):
                k("v_pk_add_f32", e[2 * p:2 * p + 2], e[2 * p:2 * p + 2], sk1)
            for p in range(2):
                k("v_pk_mul_f32", e[2 * p:2 * p + 2], e[2 * p:2 * p + 2], xg[2 * p:2 * p + 2])
            for r in range(4):
                k("v_exp_f32", e[r], e[r])
            for p in range(2):
                k("v_lshlrev_b32", xu[2 * p], 16, xu[2 * p + 1])
                k("v_and_b32", xu[2 * p + 1], smask, xu[2 * p + 1])
            for p in range(2):
                k("v_pk_add_f32", e[2 * p:2 * p + 2], e[2 * p:2 * p + 2], "1.0", mod="op_sel_hi:[1,0]")
            for r in range(4):
                k("v_rcp_f32", e[r], e[r])
            for p in range(2):
                k("v_pk_mul_f32", e[2 * p:2 * p + 2], e[2 * p:2 * p + 2], xg[2 * p:2 * p + 2])
            for p in range(2):
                k("v_cvt_pk_bf16_f32", e[2 * p + 1], e[2 * p], e[2 * p + 1])
            for p in range(2):
                k("v_lshlrev_b32", e[2 * p], 16, e[2 * p + 1])
                k("v_and_b32", e[2 * p + 1], smask, e[2 * p + 1])
            for p in range(2):
                k("v_pk_mul_f32", e[2 * p:2 * p + 2], e[2 * p:2 * p + 2], xu[2 * p:2 * p + 2])
            o = O[n & 1]; n += 1
            k("v_cvt_pk_bf16_f32", o[0], e[0], e[1])
            k("v_cvt_pk_bf16_f32", o[1], e[2], e[3])
            k("buffer_store_dwordx2", o, vh[mt], sh, 0, mod=f"offen offset:{t * 32}")


def gen_k2(stamps=False):
    k = Asm()
    k.reset_regs(v0=1, s0=4)
    if stamps:
        k.stamp_init(8)
    k.stamp()
    name = "k2_kernel"
    k("s_cmp_ge_u32", "s2", "256")
    k("s_cbranch_scc1", "K2_END")
    ptr = load_kernargs(k)
    lane = k.v(); wv = k.v(); swave = k.s()
    k("v_and_b32", lane, 63, "v0")
    k("v_lshrrev_b32", wv, 6, "v0")
    k("v_readfirstlane_b32", swave, wv)
    k.waitcnt(lgkm=0)
    swg = k.s()
    k("s_mov_b32", swg, "s2")
    gemm1_body(k, ptr, swg, lane, wv, swave)
    k.stamp()
    k.waitcnt(vm=0)
    k.stamp()
    k.stamp_dump(ptr["dbg"], 5)
    k.label("K2_END")
    k("s_endpgm")
    return name, k, dict(grid=256, block=256, lds=G1_LDS)


def gen_k23(stamps=False, hilo=True):
    import k3
    k = Asm()
    k.reset_regs(v0=1, s0=4)
    if stamps:
        k.stamp_init(8)
    k.stamp()
    name = "k23_kernel"
    k("s_cmp_ge_u32", "s2", "256")
    k("s_cbranch_scc1", "K23_END")
    ptr = load_kernargs(k)
    lane = k.v(); wv = k.v(); swave = k.s()
    k("v_and_b32", lane, 63, "v0")
    k("v_lshrrev_b32", wv, 6, "v0")
    k("v_readfirstlane_b32", swave, wv)
    k.waitcnt(lgkm=0)
    swg = k.s()
    k("s_mov_b32", swg, "s2")
    k("s_cmp_ge_u32", swave, 4)
    k.clear()
    k("s_cbranch_scc1", "K23_CONV")
    mk = k.mark()
    k("s_setprio", os.environ.get("GPRIO", "3"))
    gemm1_body(k, ptr, swg, lane, wv, swave)
    k.stamp()
    k.waitcnt(vm=0)
    k.stamp()
    k.stamp_dump(ptr["dbg"], 5)
    k("s_endpgm")
    k.release(mk)
    k.label("K23_CONV")
    sv = k.stamps if stamps else None
    k.stamps = None
    k("s_sub_u32", swave, swave, 4)
    k3.conv_body(k, ptr, swg, lane, wv, swave, hilo, lbase=G1_LDS, nbar=7)
    k.label("K23_END")
    k("s_endpgm")
    return name, k, dict(grid=256, block=512, lds=G1_LDS + k3.CONV_LDS)
```

```python
import os
from asmgen import *
from k1 import *
import k2
from k2 import gemm1_body, G1_LDS

CPITCH = 4256
CV_BASE = G1_LDS
KI_BASE = CV_BASE + 4 * CPITCH
FL_BASE = KI_BASE + 2 * 5120
K23_LDS = FL_BASE + 64


def side_body(k, ptr, swg, lane, swave, hilo=True):
    nb = [1]

    def bar():
        assert nb[0] > 0
        k("s_barrier")
        nb[0] -= 1
    st = k.s()
    i16 = k.v(); q = k.v()
    k("v_and_b32", i16, 15, lane)
    k("v_lshrrev_b32", q, 4, lane)
    kg = q
    sd = k.s(); shw = k.s()
    k("s_lshl_b32", sd, swg, 1)
    k("s_lshr_b32", st, swave, 1)
    k("s_add_u32", sd, sd, st)
    k("s_and_b32", shw, swave, 1)
    sp = shw
    vfo = k.v(); vfp = k.v(); vft = k.v()
    k("s_lshl_b32", st, swave, 2)
    k("s_add_u32", st, st, FL_BASE)
    k("v_mov_b32", vfo, st)
    k("s_xor_b32", st, st, 4)
    k("v_mov_b32", vfp, st)
    k("v_mov_b32", vft, 0)
    k("ds_write_b32", vfo, vft)
    sfl = k.s()
    BAR_EARLY = True

    def signal(val):
        k.waitcnt(lgkm=0)
        k("v_mov_b32", vft, val)
        k("ds_write_b32", vfo, vft)

    def await_(val):
        lab = k.newlabel("SPIN")
        k.clear()
        k.label(lab)
        k("ds_read_b32", vft, vfp)
        k.waitcnt(lgkm=0)
        k("v_readfirstlane_b32", sfl, vft)
        k("s_cmp_lt_u32", sfl, val)
        k("s_cbranch_scc1", lab)
    soff = k.s()
    k("s_lshl_b32", soff, sd, 8)
    k("s_lshl_b32", st, shw, 7)
    k("s_add_u32", soff, soff, st)
    v2 = k.v()
    k("v_lshlrev_b32", v2, 1, lane)
    PAR = {}
    stmp = k.s(4)
    for nm in ("lar", "ai", "cr", "ci"):
        k.srd(stmp, ptr[nm], D * N * 2)
        PAR[nm] = k.v()
        k("buffer_load_ushort", PAR[nm], v2, stmp, soff, mod="offen")
    vz = k.v()
    k("v_mov_b32", vz, 0)
    ldt = k.v()
    k.srd(stmp, ptr["ldt"], D * 2)
    k("s_lshl_b32", st, sd, 1)
    k("buffer_load_ushort", ldt, vz, stmp, st, mod="offen")
    sxt = ws_srd(k, ptr, WS_XNT, D * XT_PITCH)
    sx = k.s(); sx4 = k.s()
    k("s_mul_i32", sx, sd, XT_PITCH)
    k("s_lshl_b32", st, sp, 3)
    k("s_add_u32", sx, sx, st)
    k("s_add_u32", sx4, sx, 4096)
    va = k.v()
    k("v_lshlrev_b32", va, 4, lane)
    W = [k.v(8) for _ in range(5)]
    for it in range(5):
        so = sx if it < 4 else sx4
        k("buffer_load_dwordx4", W[it][0:4], va, sxt, so, mod=f"offen offset:{(it & 3) * 1024}")
        k("buffer_load_dwordx4", W[it][4:8], va, sxt, so, mod=f"offen offset:{(it & 3) * 1024 + 16}")
    k.waitcnt(lgkm=0)
    bar()
    mk = k.mark()
    sc = {}
    for nm, val in (("l2e_hi", L2E_HI), ("l2e_lo", L2E_LO), ("ln2", LN2), ("i2p_hi", I2P_HI), ("i2p_lo", I2P_LO)):
        sc[nm] = k.s()
        k("s_mov_b32", sc[nm], fl(val))
    pF = k.v()
    k("v_lshlrev_b32", pF, 3, i16)
    k("v_cvt_f32_u32", pF, pF)
    pR0 = k.v(); pR2 = k.v()
    t0, t1, t2 = k.v(), k.v(), k.v()
    k("v_lshlrev_b32", t0, 1, i16)
    k("v_add_u32", t0, 240, t0)
    k("v_and_b32", t1, 1, i16)
    k("v_lshlrev_b32", t1, 2, t1)
    k("v_bfe_u32", t2, i16, 1, 1)
    k("v_lshl_add_u32", t1, t2, 8, t1)
    k("v_add_u32", t1, 512, t1)
    k("v_cmp_gt_u32", "vcc", 8, i16)
    k("v_cndmask_b32", pR0, t0, i16, "vcc")
    k("v_cmp_gt_u32", "vcc", 12, i16)
    k("v_cndmask_b32", pR0, t1, pR0, "vcc")
    k("v_lshlrev_b32", pR2, 7, i16)
    k("v_add_u32", pR2, 1024, pR2)
    k("v_cvt_f32_u32", pR0, pR0)
    k("v_cvt_f32_u32", pR2, pR2)
    dt = k.v(); ndl = k.v(); dt2 = k.v()
    k.waitcnt(vm=10)
    k.stamp()
    k("v_lshlrev_b32", ldt, 16, ldt)
    exp_precise(k, dt, ldt, t0, t1, sc)
    bf16r(k, dt, dt)
    k("v_mul_f32", ndl, sc["l2e_hi"], dt)
    k("v_sub_f32", ndl, 0, ndl)
    k("v_add_f32", dt2, dt, dt)
    for nm in ("lar", "ai", "cr", "ci"):
        k("v_lshlrev_b32", PAR[nm], 16, PAR[nm])
    LP = dict(ar2=k.v(), whi=k.v(), wlo=k.v(), cr=PAR["cr"], ci=PAR["ci"], gr=k.v(), gi=k.v())
    exp_precise(k, LP["ar2"], PAR["lar"], t0, t1, sc)
    bf16r(k, LP["ar2"], LP["ar2"])
    k("v_mul_f32", LP["ar2"], LP["ar2"], ndl)
    ai = PAR["ai"]
    k("v_mul_f32", ai, ai, dt)
    k("v_mul_f32", LP["whi"], sc["i2p_hi"], ai)
    k("v_fma_f32", LP["wlo"], ai, sc["i2p_hi"], neg(LP["whi"]))
    k("v_fma_f32", LP["wlo"], ai, sc["i2p_lo"], LP["wlo"])
    k("v_mul_f32", LP["cr"], LP["cr"], dt2)
    k("v_mul_f32", LP["ci"], LP["ci"], dt2)
    s128 = k.s()
    k("s_mov_b32", s128, fl(128.0))
    k("v_mul_f32", t0, s128, LP["ar2"])
    k("v_exp_f32", t0, t0)
    k("v_mul_f32", t1, s128, LP["whi"])
    k("v_fract_f32", t1, t1)
    k("v_fma_f32", t1, LP["wlo"], s128, t1)
    k("v_sin_f32", LP["gi"], t1)
    k("v_cos_f32", LP["gr"], t1)
    k("v_mul_f32", LP["gi"], LP["gi"], t0)
    k("v_mul_f32", LP["gr"], LP["gr"], t0)
    Dacc = [k.v(4) for _ in range(3)]
    B1, B2 = k.v(), k.v()
    mag = [k.v() for _ in range(3)]; rv = [k.v() for _ in range(3)]; tt = [k.v() for _ in range(3)]
    Er = [k.v() for _ in range(4)]; Ei = [k.v() for _ in range(4)]
    PS = [pR0, pR2, pF]
    names = ("ar2", "whi", "wlo", "cr", "ci", "gr", "gi")
    PRM = [{nm: k.v() for nm in names} for _ in range(2)]
    KB = eval(os.environ.get("KB", "(1,4,7,10,13)"))

    def bcast(s):
        for nm in names:
            k("v_mov_b32_dpp", PRM[s & 1][nm], LP[nm], mod=f"row_newbcast:{s} row_mask:0xf bank_mask:0xf")
    bcast(0)
    for s in range(16):
        P = PRM[s & 1]
        for j in range(3):
            k("v_mul_f32", mag[j], P["ar2"], PS[j])
        for j in range(3):
            k("v_mul_f32", rv[j], P["whi"], PS[j])
        for j in range(3):
            k("v_exp_f32", mag[j], mag[j])
        for j in range(3):
            k("v_fma_f32", tt[j], P["whi"], PS[j], neg(rv[j]))
        for j in range(3):
            k("v_fma_f32", tt[j], P["wlo"], PS[j], tt[j])
        for j in range(3):
            k("v_fract_f32", rv[j], rv[j])
        for j in range(3):
            k("v_add_f32", rv[j], rv[j], tt[j])
        for j in range(3):
            k("v_sin_f32", Ei[j], rv[j])
        for j in range(3):
            k("v_cos_f32", Er[j], rv[j])
        if s < 15:
            bcast(s + 1)
        for j in (2, 0, 1):
            k("v_mul_f32", Ei[j], mag[j], Ei[j])
            k("v_mul_f32", Er[j], mag[j], Er[j])
        k("v_mul_f32", B1, P["ci"], Ei[2])
        k("v_mul_f32", B2, P["cr"], Ei[2])
        k("v_mul_f32", Er[3], P["gi"], Ei[0])
        k("v_mul_f32", Ei[3], P["gr"], Ei[0])
        k("v_fma_f32", B1, P["cr"], Er[2], neg(B1))
        k("v_fma_f32", B2, neg(P["ci"]), Er[2], neg(B2))
        k("v_fma_f32", Er[3], P["gr"], Er[0], neg(Er[3]))
        k("v_fma_f32", Ei[3], P["gi"], Er[0], Ei[3])
        for r, j in ((0, 0), (1, 3), (2, 1)):
            k("v_mfma_f32_16x16x4_f32", Dacc[r], Er[j], B1, Dacc[r] if s else 0)
        for r, j in ((0, 0), (1, 3), (2, 1)):
            k("v_mfma_f32_16x16x4_f32", Dacc[r], Ei[j], B2, Dacc[r])
        pass
    k.stamp()
    sreg = k.s()
    k("s_lshr_b32", sreg, swave, 1)
    k("s_mul_i32", sreg, sreg, 2 * CPITCH)
    k("s_add_u32", sreg, sreg, CV_BASE)
    vb = k.v()
    k("v_mul_u32_u24", vb, 48, lane)
    k("v_add_u32", vb, sreg, vb)
    k("s_cmp_eq_u32", shw, 0)
    k.clear()
    k("s_cbranch_scc1", "K23_KG_A")
    for r in range(3):
        k("ds_write_b128", vb, Dacc[r], mod=f"offset:{16 * r}")
    signal(1)
    await_(1)
    k("s_branch", "K23_KG_B")
    k.label("K23_KG_A")
    await_(1)
    P2 = [k.v(4) for _ in range(3)]
    for r in range(3):
        k("ds_read_b128", P2[r], vb, mod=f"offset:{16 * r}")
    k.waitcnt(lgkm=0)
    for r in range(3):
        for j in range(4):
            k("v_add_f32", Dacc[r][j], Dacc[r][j], P2[r][j])
    mx = k.v(); mt = k.v()
    k("v_max3_f32", mx, absm(Dacc[0][0]), absm(Dacc[0][1]), absm(Dacc[0][2]))
    vals = [Dacc[r][j] for r in range(3) for j in range(4)][3:]
    for a in range(0, 8, 2):
        k("v_max3_f32", mx, absm(vals[a]), absm(vals[a + 1]), mx)
    k("v_max_f32", mx, absm(vals[8]), mx)
    reduce64_sum(k, [mx], [mt], op="v_max_f32")
    scl = k.v(); inv = k.v()
    k("v_bfe_u32", t0, mx, 23, 8)
    k("v_sub_u32", t1, 268, t0)
    k("v_mov_b32", t2, 240)
    k("v_med3_i32", t1, t1, 14, t2)
    k("v_lshlrev_b32", scl, 23, t1)
    k("v_sub_u32", t1, 254, t1)
    k("v_lshlrev_b32", inv, 23, t1)
    ub = k.v(); uadd = k.v()
    k("v_lshlrev_b32", t0, 2, q)
    k("v_lshl_add_u32", t0, i16, 3, t0)
    k("v_lshlrev_b32", t1, 2, i16)
    k("v_add_u32", t1, 256, t1)
    k("v_mov_b32", t2, 384)
    k("v_lshl_add_u32", t2, i16, 1, t2)
    k("v_cmp_gt_u32", "vcc", 2, q)
    k("v_cndmask_b32", ub, t1, t0, "vcc")
    k("v_mov_b32", uadd, 64)
    k("v_mov_b32", t0, 128)
    k("v_cndmask_b32", uadd, uadd, t0, "vcc")
    k("v_cmp_gt_u32", "vcc", 3, q)
    k("v_cndmask_b32", ub, t2, ub, "vcc")
    k("v_mov_b32", t0, 32)
    k("v_cndmask_b32", uadd, t0, uadd, "vcc")
    jx = k.v()
    k("v_mov_b32", t0, 62)
    k("v_mov_b32", t1, 0)
    k("v_cndmask_b32", jx, t0, t1, "vcc")
    k("v_lshlrev_b32", ub, 2, ub)
    k("v_add_u32", ub, sreg, ub)
    k("v_lshlrev_b32", uadd, 2, uadd)
    k("v_lshlrev_b32", jx, 2, jx)
    a_t0lo = ub
    a_t0hi = k.v(); a_t1lo = k.v(); a_t1hi = k.v(); a_t2 = k.v()
    k("v_add_u32", a_t0hi, ub, jx)
    k("v_add_u32", a_t1lo, ub, uadd)
    k("v_add_u32", a_t1hi, a_t1lo, jx)
    k("v_lshl_add_u32", a_t2, q, 6, i16)
    k("v_lshlrev_b32", a_t2, 2, a_t2)
    k("v_add_u32", a_t2, sreg, a_t2)
    hv = [k.v() for _ in range(4)]; lv = [k.v() for _ in range(4)]; tv = [k.v() for _ in range(4)]
    for r in range(3):
        for j in range(4):
            k("v_mul_f32", tv[j], Dacc[r][j], scl)
        for j in range(4):
            k("v_cvt_f16_f32", hv[j], tv[j])
        for j in range(4):
            k("v_cvt_f32_f16", lv[j], hv[j])
        for j in range(4):
            k("v_sub_f32", lv[j], tv[j], lv[j])
        for j in range(4):
            k("v_cvt_f16_f32", lv[j], lv[j])
        for j in range(4):
            k("v_pack_b32_f16", hv[j], hv[j], lv[j])
        for j in range(4):
            if r < 2:
                addr = ((a_t0lo, a_t0hi), (a_t1lo, a_t1hi))[r][j >> 1]
                off = 4 * j
            else:
                addr = a_t2
                off = 2048 + 64 * j
            k("ds_write_b32", addr, hv[j], mod=f"offset:{off}")
    k("v_mov_b32", t0, sreg)
    k("ds_write_b32", t0, inv, mod=f"offset:{767 * 4}")
    signal(1)
    k.clear()
    k.label("K23_KG_B")
    k.release(mk)
    k.stamp()
    sreg = k.s()
    k("s_lshr_b32", sreg, swave, 1)
    k("s_mul_i32", sreg, sreg, 2 * CPITCH)
    k("s_add_u32", sreg, sreg, CV_BASE)
    ski = k.s()
    k("s_lshr_b32", ski, swave, 1)
    k("s_mul_i32", ski, ski, 5120)
    k("s_add_u32", ski, ski, KI_BASE)
    kinv = k.v()
    t0, t1 = k.v(), k.v()
    k("v_mov_b32", t0, sreg)
    k("ds_read_b32", kinv, t0, mod=f"offset:{767 * 4}")
    m2 = k.mark()
    vl = k.v()
    k("v_lshlrev_b32", vl, 4, lane)
    k("s_lshl_b32", st, shw, 10)
    k("v_add_u32", vl, st, vl)
    sbias = k.s()
    k("s_sub_u32", sbias, sreg, 4 * 17024)
    RH = k.v(16); OH = k.v(8)
    ua = [k.v() for _ in range(4)]; ut = [k.v() for _ in range(4)]; tv = [k.v() for _ in range(4)]
    sperm_lo = k.s()
    k("s_mov_b32", sperm_lo, "0x05040100")
    for e0_ in range(0, 16, 4):
        for j in range(4):
            k("v_add_u32", ut[j], e0_ + j, vl)
        for j in range(4):
            k("v_cvt_f32_u32", ua[j], ut[j])
        for j in range(4):
            k("v_cvt_pk_bf16_f32", ua[j], ua[j], ua[j])
        for j in range(4):
            k("v_and_b32", ua[j], "0xffff", ua[j])
        for j in range(4):
            k("v_lshl_add_u32", ua[j], ua[j], 2, sbias)
            k("v_lshl_add_u32", tv[j], ut[j], 2, sreg)
        for j in range(4):
            k("v_cmp_gt_u32", "vcc", 128, ut[j])
            k("v_cndmask_b32", ua[j], ua[j], tv[j], "vcc")
        for j in range(4):
            e = e0_ + j
            pos = (e >> 3) * 8 + (7 - (e & 7))
            k("ds_read_b32", RH[pos], ua[j])
    zz = k.v(4)
    for j in range(4):
        k("v_mov_b32", zz[j], 0)
    vki = k.v(); vki2 = k.v()
    s78 = k.s()
    k("s_mov_b32", s78, "0x78")
    k("v_bfe_u32", vki, vl, 7, 2)
    k("v_lshlrev_b32", vki, 1, vki)
    k("v_lshrrev_b32", vki, vki, s78)
    k("v_and_b32", vki, 3, vki)
    k("v_bfe_u32", vki2, vl, 3, 2)
    k("v_xor_b32", vki, vki, vki2)
    k("v_xor_b32", vki2, 1, vki)
    k("v_lshrrev_b32", tv[0], 5, vl)
    k("v_lshlrev_b32", tv[0], 6, tv[0])
    k("v_add_u32", tv[0], ski, tv[0])
    k("v_lshl_add_u32", vki, vki, 4, tv[0])
    k("v_lshl_add_u32", vki2, vki2, 4, tv[0])
    vkz = k.v()
    k("v_and_b32", vkz, 31, lane)
    k("v_lshlrev_b32", vkz, 4, vkz)
    k("s_lshl_b32", st, shw, 9)
    k("s_add_u32", st, st, ski)
    k("v_add_u32", vkz, st, vkz)
    k("ds_write_b128", vkz, zz)
    k.waitcnt(lgkm=1)
    for j in range(8):
        k("v_perm_b32", OH[j], RH[2 * j + 1], RH[2 * j], sperm_lo)
    k("ds_write_b128", vki, OH[0:4], mod="offset:1024")
    k("ds_write_b128", vki2, OH[4:8], mod="offset:1024")
    signal(2)
    await_(2)
    k.release(m2)
    if os.environ.get("CPRIO"):
        k("s_setprio", os.environ["CPRIO"])
    sthr = k.s(); scb = k.s()
    k("s_cmp_lt_u32", swave, 2)
    k("s_cselect_b32", sthr, 24, 28)
    k("s_cselect_b32", scb, 2 * k2.G1_STAGE, 0)
    lab = k.newlabel("WG")
    vgc = k.v()
    k("v_mov_b32", vgc, FL_BASE + 32)
    k.clear()
    k.label(lab)
    k("s_sleep", 1)
    k("ds_read_b32", vft, vgc)
    k.waitcnt(lgkm=0)
    k("v_readfirstlane_b32", sfl, vft)
    k("s_cmp_lt_u32", sfl, sthr)
    k("s_cbranch_scc1", lab)
    m3 = k.mark()
    slb = k.s()
    k("s_mul_i32", slb, shw, 4 * CPITCH)
    k("s_add_u32", slb, slb, scb)
    vw = k.v()
    k("v_add_u32", vw, slb, va)
    T1 = k.v(4); T2 = k.v(4); T3 = k.v(4)
    sex = k.s(2)
    k.waitcnt(vm=0)
    for it in range(5):
        w = W[it]
        if it == 4:
            k("v_cmp_gt_u32", "vcc", 4, lane)
            k("s_and_saveexec_b64", sex, "vcc")
        for j in range(4):
            k("v_alignbit_b32", T1[j], w[j + 1], w[j], 16)
            k("v_mov_b32", T2[j], w[j + 1])
            k("v_alignbit_b32", T3[j], w[j + 2], w[j + 1], 16)
        k("ds_write_b128", vw, w[0:4], mod=f"offset:{it * 1024}")
        k("ds_write_b128", vw, T1, mod=f"offset:{it * 1024 + CPITCH}")
        k("ds_write_b128", vw, T2, mod=f"offset:{it * 1024 + 2 * CPITCH}")
        k("ds_write_b128", vw, T3, mod=f"offset:{it * 1024 + 3 * CPITCH}")
        if it == 4:
            k("s_mov_b64", "exec", sex)
    k.release(m3)
    signal(3)
    await_(3)
    k.stamp()
    syt = ws_srd(k, ptr, WS_YT, D * L * 2)
    vr = k.v()
    k("v_add_u32", t0, 1, i16)
    k("v_and_b32", t1, 7, t0)
    k("v_mul_u32_u24", vr, CPITCH, t1)
    k("v_lshrrev_b32", t0, 3, t0)
    k("v_sub_u32", t0, t0, kg)
    k("v_add_u32", t0, 3, t0)
    k("v_lshl_add_u32", vr, t0, 4, vr)
    sb2 = k.s()
    k("s_lshl_b32", sb2, sp, 5)
    k("s_add_u32", st, scb, sb2)
    k("v_add_u32", vr, st, vr)
    vkrs = [k.v() for _ in range(3)]
    vm = k.v(); vm2 = k.v()
    s78 = k.s()
    k("s_mov_b32", s78, "0x78")
    Y = [k.v(4) for _ in range(4)]
    NBF = 3
    KF = [[k.v(4) for _ in range(4)] for _ in range(NBF)]
    A = [[k.v(4) for _ in range(4)] for _ in range(NBF)]

    def rd(c0):
        vkr = vkrs[c0 % 3]
        k("v_add_u32", vm, 16 - c0, i16)
        k("v_bfe_u32", vm2, vm, 2, 2)
        k("v_lshlrev_b32", vm2, 1, vm2)
        k("v_lshrrev_b32", vm2, vm2, s78)
        k("v_and_b32", vm2, 3, vm2)
        k("v_xor_b32", vm2, vm2, kg)
        k("v_lshlrev_b32", vm, 6, vm)
        k("v_lshl_add_u32", vkr, vm2, 4, vm)
        k("v_add_u32", vkr, ski, vkr)
        for t in range(4):
            k("ds_read_b128", KF[c0 % NBF][t], vkr, mod=f"offset:{1024 * t}")
        for c1 in range(4):
            k("ds_read_b128", A[c0 % NBF][c1], vr, mod=f"offset:{64 * (16 * c1 + c0)}")
    swd = k.s(4); k.srd(swd, ptr["wd"], F * D * 2)
    swo = k.s()
    k("s_lshr_b32", swo, swg, 3)
    k("s_lshl_b32", swo, swo, 2)
    k("s_add_u32", swo, swo, swave)
    k("s_mul_i32", swo, swo, 14 * 1024)
    vpd = k.v(4)
    rd(0)
    for c0 in range(16):
        if c0 == 0:
            rd(1)
        if c0 < 15:
            k.waitcnt(lgkm=8)
        else:
            k.waitcnt(lgkm=0)
        if c0 + 2 < 16:
            rd(c0 + 2)
        for c1 in range(4):
            for T in range(c1, 4):
                first = (c0 == 0 and c1 == 0)
                k("v_mfma_f32_16x16x32_f16", Y[T], A[c0 % NBF][c1], KF[c0 % NBF][T - c1], 0 if first else Y[T])
        if c0 < 14:
            k("buffer_load_dwordx4", vpd, va, swd, swo, mod="offen")
            k("s_add_u32", swo, swo, 1024)
    vo = k.v()
    k("v_lshlrev_b32", vo, 6, i16)
    k("v_lshl_add_u32", vo, kg, 3, vo)
    k("v_add_u32", vo, sb2, vo)
    sk = k.s()
    k("s_lshl_b32", sk, sd, 12)
    O = [k.v(2) for _ in range(4)]
    for T in range(4):
        for r in range(4):
            k("v_mul_f32", Y[T][r], Y[T][r], kinv)
        k("v_cvt_pk_bf16_f32", O[T][0], Y[T][0], Y[T][1])
        k("v_cvt_pk_bf16_f32", O[T][1], Y[T][2], Y[T][3])
        k("buffer_store_dwordx2", O[T], vo, syt, sk, mod=f"offen offset:{T * 1024}")


def gen_k23b(stamps=False, hilo=True):
    k = Asm()
    k.reset_regs(v0=1, s0=4)
    if stamps:
        k.stamp_init(8)
    k.stamp()
    name = "k23_kernel"
    k("s_cmp_ge_u32", "s2", "256")
    k("s_cbranch_scc1", "K23_END")
    ptr = load_kernargs(k)
    lane = k.v(); wv = k.v(); swave = k.s()
    k("v_and_b32", lane, 63, "v0")
    k("v_lshrrev_b32", wv, 6, "v0")
    k("v_readfirstlane_b32", swave, wv)
    k.waitcnt(lgkm=0)
    swg = k.s()
    k("s_mov_b32", swg, "s2")
    k("s_cmp_ge_u32", swave, 4)
    k.clear()
    k("s_cbranch_scc1", "K23_SIDE")
    mk = k.mark()
    side_st = os.environ.get("SIDE_ST")
    sv = k.stamps if stamps else None
    if side_st:
        k.stamps = None
    k("s_setprio", os.environ.get("GPRIO", "0"))
    gemm1_body(k, ptr, swg, lane, wv, swave, cnt_addr=FL_BASE + 32)
    k.stamp()
    k.waitcnt(vm=0)
    k.stamp()
    k.stamp_dump(ptr["dbg"], 5)
    k("s_endpgm")
    k.release(mk)
    k.label("K23_SIDE")
    k.stamps = sv if (side_st and stamps) else None
    k.nstamp = 1
    k("s_sub_u32", swave, swave, 4)
    k("s_setprio", os.environ.get("SPRIO", "3"))
    side_body(k, ptr, swg, lane, swave, hilo)
    if side_st and stamps:
        k.stamp()
        k("v_subrev_u32", "v0", 256, "v0") if False else k.raw("    v_subrev_u32 v0, 256, v0")
        k.stamp_dump(ptr["dbg"], 5)
    k.label("K23_END")
    k("s_endpgm")
    return name, k, dict(grid=256, block=512, lds=K23_LDS)
```

```python
import os
from asmgen import *
from k1 import *
import k2
from k2 import gemm1_body, G1_LDS

CPITCH = 4256
CV_BASE = G1_LDS
KI_BASE = CV_BASE + 4 * CPITCH
FL_BASE = KI_BASE + 2 * 5120
K23_LDS = FL_BASE + 64


def side_body(k, ptr, swg, lane, swave, hilo=True):
    nb = [1]

    def bar():
        assert nb[0] > 0
        k("s_barrier")
        nb[0] -= 1
    st = k.s()
    i16 = k.v(); q = k.v()
    k("v_and_b32", i16, 15, lane)
    k("v_lshrrev_b32", q, 4, lane)
    kg = q
    sd = k.s(); shw = k.s()
    k("s_lshl_b32", sd, swg, 1)
    k("s_lshr_b32", st, swave, 1)
    k("s_add_u32", sd, sd, st)
    k("s_and_b32", shw, swave, 1)
    sp = shw
    vfo = k.v(); vfp = k.v(); vft = k.v()
    k("s_lshl_b32", st, swave, 2)
    k("s_add_u32", st, st, FL_BASE)
    k("v_mov_b32", vfo, st)
    k("s_xor_b32", st, st, 4)
    k("v_mov_b32", vfp, st)
    k("v_mov_b32", vft, 0)
    k("ds_write_b32", vfo, vft)
    sfl = k.s()
    BAR_EARLY = True

    def signal(val):
        k.waitcnt(lgkm=0)
        k("v_mov_b32", vft, val)
        k("ds_write_b32", vfo, vft)

    def await_(val):
        lab = k.newlabel("SPIN")
        k.clear()
        k.label(lab)
        k("ds_read_b32", vft, vfp)
        k.waitcnt(lgkm=0)
        k("v_readfirstlane_b32", sfl, vft)
        k("s_cmp_lt_u32", sfl, val)
        k("s_cbranch_scc1", lab)
    soff = k.s()
    k("s_lshl_b32", soff, sd, 8)
    k("s_lshl_b32", st, shw, 7)
    k("s_add_u32", soff, soff, st)
    v2 = k.v()
    k("v_lshlrev_b32", v2, 1, lane)
    PAR = {}
    stmp = k.s(4)
    for nm in ("lar", "ai", "cr", "ci"):
        k.srd(stmp, ptr[nm], D * N * 2)
        PAR[nm] = k.v()
        k("buffer_load_ushort", PAR[nm], v2, stmp, soff, mod="offen")
    vz = k.v()
    k("v_mov_b32", vz, 0)
    ldt = k.v()
    k.srd(stmp, ptr["ldt"], D * 2)
    k("s_lshl_b32", st, sd, 1)
    k("buffer_load_ushort", ldt, vz, stmp, st, mod="offen")
    sxt = ws_srd(k, ptr, WS_XNT, D * XT_PITCH)
    sx = k.s(); sx4 = k.s()
    k("s_mul_i32", sx, sd, XT_PITCH)
    k("s_lshl_b32", st, sp, 3)
    k("s_add_u32", sx, sx, st)
    k("s_add_u32", sx4, sx, 4096)
    va = k.v()
    k("v_lshlrev_b32", va, 4, lane)
    W = [k.v(8) for _ in range(5)]
    for it in range(5):
        so = sx if it < 4 else sx4
        k("buffer_load_dwordx4", W[it][0:4], va, sxt, so, mod=f"offen offset:{(it & 3) * 1024}")
        k("buffer_load_dwordx4", W[it][4:8], va, sxt, so, mod=f"offen offset:{(it & 3) * 1024 + 16}")
    k.waitcnt(lgkm=0)
    bar()
    mk = k.mark()
    sc = {}
    for nm, val in (("l2e_hi", L2E_HI), ("l2e_lo", L2E_LO), ("ln2", LN2), ("i2p_hi", I2P_HI), ("i2p_lo", I2P_LO)):
        sc[nm] = k.s()
        k("s_mov_b32", sc[nm], fl(val))
    pF = k.v()
    k("v_lshlrev_b32", pF, 3, i16)
    k("v_cvt_f32_u32", pF, pF)
    pR0 = k.v(); pR2 = k.v()
    t0, t1, t2 = k.v(), k.v(), k.v()
    k("v_lshlrev_b32", t0, 1, i16)
    k("v_add_u32", t0, 240, t0)
    k("v_and_b32", t1, 1, i16)
    k("v_lshlrev_b32", t1, 2, t1)
    k("v_bfe_u32", t2, i16, 1, 1)
    k("v_lshl_add_u32", t1, t2, 8, t1)
    k("v_add_u32", t1, 512, t1)
    k("v_cmp_gt_u32", "vcc", 8, i16)
    k("v_cndmask_b32", pR0, t0, i16, "vcc")
    k("v_cmp_gt_u32", "vcc", 12, i16)
    k("v_cndmask_b32", pR0, t1, pR0, "vcc")
    k("v_lshlrev_b32", pR2, 7, i16)
    k("v_add_u32", pR2, 1024, pR2)
    k("v_cvt_f32_u32", pR0, pR0)
    k("v_cvt_f32_u32", pR2, pR2)
    dt = k.v(); ndl = k.v(); dt2 = k.v()
    k.waitcnt(vm=10)
    k.stamp()
    k("v_lshlrev_b32", ldt, 16, ldt)
    exp_precise(k, dt, ldt, t0, t1, sc)
    bf16r(k, dt, dt)
    k("v_mul_f32", ndl, sc["l2e_hi"], dt)
    k("v_sub_f32", ndl, 0, ndl)
    k("v_add_f32", dt2, dt, dt)
    for nm in ("lar", "ai", "cr", "ci"):
        k("v_lshlrev_b32", PAR[nm], 16, PAR[nm])
    LP = dict(ar2=k.v(), whi=k.v(), wlo=k.v(), cr=PAR["cr"], ci=PAR["ci"], gr=k.v(), gi=k.v())
    exp_precise(k, LP["ar2"], PAR["lar"], t0, t1, sc)
    bf16r(k, LP["ar2"], LP["ar2"])
    k("v_mul_f32", LP["ar2"], LP["ar2"], ndl)
    ai = PAR["ai"]
    k("v_mul_f32", ai, ai, dt)
    k("v_mul_f32", LP["whi"], sc["i2p_hi"], ai)
    k("v_fma_f32", LP["wlo"], ai, sc["i2p_hi"], neg(LP["whi"]))
    k("v_fma_f32", LP["wlo"], ai, sc["i2p_lo"], LP["wlo"])
    k("v_mul_f32", LP["cr"], LP["cr"], dt2)
    k("v_mul_f32", LP["ci"], LP["ci"], dt2)
    s128 = k.s()
    k("s_mov_b32", s128, fl(128.0))
    k("v_mul_f32", t0, s128, LP["ar2"])
    k("v_exp_f32", t0, t0)
    k("v_mul_f32", t1, s128, LP["whi"])
    k("v_fract_f32", t1, t1)
    k("v_fma_f32", t1, LP["wlo"], s128, t1)
    k("v_sin_f32", LP["gi"], t1)
    k("v_cos_f32", LP["gr"], t1)
    k("v_mul_f32", LP["gi"], LP["gi"], t0)
    k("v_mul_f32", LP["gr"], LP["gr"], t0)
    Dacc = [k.v(4) for _ in range(3)]
    B1, B2 = k.v(), k.v()
    mag = [k.v() for _ in range(3)]; rv = [k.v() for _ in range(3)]; tt = [k.v() for _ in range(3)]
    Er = [k.v() for _ in range(4)]; Ei = [k.v() for _ in range(4)]
    PS = [pR0, pR2, pF]
    names = ("ar2", "whi", "wlo", "cr", "ci", "gr", "gi")
    PRM = [{nm: k.v() for nm in names} for _ in range(2)]
    KB = eval(os.environ.get("KB", "(1,4,7,10,13)"))

    def bcast(s):
        for nm in names:
            k("v_mov_b32_dpp", PRM[s & 1][nm], LP[nm], mod=f"row_newbcast:{s} row_mask:0xf bank_mask:0xf")
    bcast(0)
    for s in range(16):
        P = PRM[s & 1]
        for j in range(3):
            k("v_mul_f32", mag[j], P["ar2"], PS[j])
        for j in range(3):
            k("v_mul_f32", rv[j], P["whi"], PS[j])
        for j in range(3):
            k("v_exp_f32", mag[j], mag[j])
        for j in range(3):
            k("v_fma_f32", tt[j], P["whi"], PS[j], neg(rv[j]))
        for j in range(3):
            k("v_fma_f32", tt[j], P["wlo"], PS[j], tt[j])
        for j in range(3):
            k("v_fract_f32", rv[j], rv[j])
        for j in range(3):
            k("v_add_f32", rv[j], rv[j], tt[j])
        for j in range(3):
            k("v_sin_f32", Ei[j], rv[j])
        for j in range(3):
            k("v_cos_f32", Er[j], rv[j])
        if s < 15:
            bcast(s + 1)
        for j in (2, 0, 1):
            k("v_mul_f32", Ei[j], mag[j], Ei[j])
            k("v_mul_f32", Er[j], mag[j], Er[j])
        k("v_mul_f32", B1, P["ci"], Ei[2])
        k("v_mul_f32", B2, P["cr"], Ei[2])
        k("v_mul_f32", Er[3], P["gi"], Ei[0])
        k("v_mul_f32", Ei[3], P["gr"], Ei[0])
        k("v_fma_f32", B1, P["cr"], Er[2], neg(B1))
        k("v_fma_f32", B2, neg(P["ci"]), Er[2], neg(B2))
        k("v_fma_f32", Er[3], P["gr"], Er[0], neg(Er[3]))
        k("v_fma_f32", Ei[3], P["gi"], Er[0], Ei[3])
        for r, j in ((0, 0), (1, 3), (2, 1)):
            k("v_mfma_f32_16x16x4_f32", Dacc[r], Er[j], B1, Dacc[r] if s else 0)
        for r, j in ((0, 0), (1, 3), (2, 1)):
            k("v_mfma_f32_16x16x4_f32", Dacc[r], Ei[j], B2, Dacc[r])
        pass
    k.stamp()
    sreg = k.s()
    k("s_lshr_b32", sreg, swave, 1)
    k("s_mul_i32", sreg, sreg, 2 * CPITCH)
    k("s_add_u32", sreg, sreg, CV_BASE)
    vb = k.v()
    k("v_mul_u32_u24", vb, 48, lane)
    k("v_add_u32", vb, sreg, vb)
    k("s_cmp_eq_u32", shw, 0)
    k.clear()
    k("s_cbranch_scc1", "K23_KG_A")
    for r in range(3):
        k("ds_write_b128", vb, Dacc[r], mod=f"offset:{16 * r}")
    signal(1)
    await_(1)
    k("s_branch", "K23_KG_B")
    k.label("K23_KG_A")
    await_(1)
    P2 = [k.v(4) for _ in range(3)]
    for r in range(3):
        k("ds_read_b128", P2[r], vb, mod=f"offset:{16 * r}")
    k.waitcnt(lgkm=0)
    for r in range(3):
        for j in range(4):
            k("v_add_f32", Dacc[r][j], Dacc[r][j], P2[r][j])
    mx = k.v(); mt = k.v()
    k("v_max3_f32", mx, absm(Dacc[0][0]), absm(Dacc[0][1]), absm(Dacc[0][2]))
    vals = [Dacc[r][j] for r in range(3) for j in range(4)][3:]
    for a in range(0, 8, 2):
        k("v_max3_f32", mx, absm(vals[a]), absm(vals[a + 1]), mx)
    k("v_max_f32", mx, absm(vals[8]), mx)
    reduce64_sum(k, [mx], [mt], op="v_max_f32")
    scl = k.v(); inv = k.v()
    k("v_bfe_u32", t0, mx, 23, 8)
    k("v_sub_u32", t1, 268, t0)
    k("v_mov_b32", t2, 240)
    k("v_med3_i32", t1, t1, 14, t2)
    k("v_lshlrev_b32", scl, 23, t1)
    k("v_sub_u32", t1, 254, t1)
    k("v_lshlrev_b32", inv, 23, t1)
    ub = k.v(); uadd = k.v()
    k("v_lshlrev_b32", t0, 2, q)
    k("v_lshl_add_u32", t0, i16, 3, t0)
    k("v_lshlrev_b32", t1, 2, i16)
    k("v_add_u32", t1, 256, t1)
    k("v_mov_b32", t2, 384)
    k("v_lshl_add_u32", t2, i16, 1, t2)
    k("v_cmp_gt_u32", "vcc", 2, q)
    k("v_cndmask_b32", ub, t1, t0, "vcc")
    k("v_mov_b32", uadd, 64)
    k("v_mov_b32", t0, 128)
    k("v_cndmask_b32", uadd, uadd, t0, "vcc")
    k("v_cmp_gt_u32", "vcc", 3, q)
    k("v_cndmask_b32", ub, t2, ub, "vcc")
    k("v_mov_b32", t0, 32)
    k("v_cndmask_b32", uadd, t0, uadd, "vcc")
    jx = k.v()
    k("v_mov_b32", t0, 62)
    k("v_mov_b32", t1, 0)
    k("v_cndmask_b32", jx, t0, t1, "vcc")
    k("v_lshlrev_b32", ub, 2, ub)
    k("v_add_u32", ub, sreg, ub)
    k("v_lshlrev_b32", uadd, 2, uadd)
    k("v_lshlrev_b32", jx, 2, jx)
    a_t0lo = ub
    a_t0hi = k.v(); a_t1lo = k.v(); a_t1hi = k.v(); a_t2 = k.v()
    k("v_add_u32", a_t0hi, ub, jx)
    k("v_add_u32", a_t1lo, ub, uadd)
    k("v_add_u32", a_t1hi, a_t1lo, jx)
    k("v_lshl_add_u32", a_t2, q, 6, i16)
    k("v_lshlrev_b32", a_t2, 2, a_t2)
    k("v_add_u32", a_t2, sreg, a_t2)
    hv = [k.v() for _ in range(4)]; lv = [k.v() for _ in range(4)]; tv = [k.v() for _ in range(4)]
    for r in range(3):
        for j in range(4):
            k("v_mul_f32", tv[j], Dacc[r][j], scl)
        for j in range(4):
            k("v_cvt_f16_f32", hv[j], tv[j])
        for j in range(4):
            k("v_cvt_f32_f16", lv[j], hv[j])
        for j in range(4):
            k("v_sub_f32", lv[j], tv[j], lv[j])
        for j in range(4):
            k("v_cvt_f16_f32", lv[j], lv[j])
        for j in range(4):
            k("v_pack_b32_f16", hv[j], hv[j], lv[j])
        for j in range(4):
            if r < 2:
                addr = ((a_t0lo, a_t0hi), (a_t1lo, a_t1hi))[r][j >> 1]
                off = 4 * j
            else:
                addr = a_t2
                off = 2048 + 64 * j
            k("ds_write_b32", addr, hv[j], mod=f"offset:{off}")
    k("v_mov_b32", t0, sreg)
    k("ds_write_b32", t0, inv, mod=f"offset:{767 * 4}")
    signal(1)
    k.clear()
    k.label("K23_KG_B")
    k.release(mk)
    k.stamp()
    sreg = k.s()
    k("s_lshr_b32", sreg, swave, 1)
    k("s_mul_i32", sreg, sreg, 2 * CPITCH)
    k("s_add_u32", sreg, sreg, CV_BASE)
    ski = k.s()
    k("s_lshr_b32", ski, swave, 1)
    k("s_mul_i32", ski, ski, 5120)
    k("s_add_u32", ski, ski, KI_BASE)
    kinv = k.v()
    t0, t1 = k.v(), k.v()
    k("v_mov_b32", t0, sreg)
    k("ds_read_b32", kinv, t0, mod=f"offset:{767 * 4}")
    m2 = k.mark()
    vl = k.v()
    k("v_lshlrev_b32", vl, 4, lane)
    k("s_lshl_b32", st, shw, 10)
    k("v_add_u32", vl, st, vl)
    sbias = k.s()
    k("s_sub_u32", sbias, sreg, 4 * 17024)
    RH = k.v(16); OH = k.v(8)
    ua = [k.v() for _ in range(4)]; ut = [k.v() for _ in range(4)]; tv = [k.v() for _ in range(4)]
    sperm_lo = k.s()
    k("s_mov_b32", sperm_lo, "0x05040100")
    for e0_ in range(0, 16, 4):
        for j in range(4):
            k("v_add_u32", ut[j], e0_ + j, vl)
        for j in range(4):
            k("v_cvt_f32_u32", ua[j], ut[j])
        for j in range(4):
            k("v_cvt_pk_bf16_f32", ua[j], ua[j], ua[j])
        for j in range(4):
            k("v_and_b32", ua[j], "0xffff", ua[j])
        for j in range(4):
            k("v_lshl_add_u32", ua[j], ua[j], 2, sbias)
            k("v_lshl_add_u32", tv[j], ut[j], 2, sreg)
        for j in range(4):
            k("v_cmp_gt_u32", "vcc", 128, ut[j])
            k("v_cndmask_b32", ua[j], ua[j], tv[j], "vcc")
        for j in range(4):
            e = e0_ + j
            pos = (e >> 3) * 8 + (7 - (e & 7))
            k("ds_read_b32", RH[pos], ua[j])
    zz = k.v(4)
    for j in range(4):
        k("v_mov_b32", zz[j], 0)
    vki = k.v(); vki2 = k.v()
    s78 = k.s()
    k("s_mov_b32", s78, "0x78")
    k("v_bfe_u32", vki, vl, 7, 2)
    k("v_lshlrev_b32", vki, 1, vki)
    k("v_lshrrev_b32", vki, vki, s78)
    k("v_and_b32", vki, 3, vki)
    k("v_bfe_u32", vki2, vl, 3, 2)
    k("v_xor_b32", vki, vki, vki2)
    k("v_xor_b32", vki2, 1, vki)
    k("v_lshrrev_b32", tv[0], 5, vl)
    k("v_lshlrev_b32", tv[0], 6, tv[0])
    k("v_add_u32", tv[0], ski, tv[0])
    k("v_lshl_add_u32", vki, vki, 4, tv[0])
    k("v_lshl_add_u32", vki2, vki2, 4, tv[0])
    vkz = k.v()
    k("v_and_b32", vkz, 31, lane)
    k("v_lshlrev_b32", vkz, 4, vkz)
    k("s_lshl_b32", st, shw, 9)
    k("s_add_u32", st, st, ski)
    k("v_add_u32", vkz, st, vkz)
    k("ds_write_b128", vkz, zz)
    k.waitcnt(lgkm=1)
    for j in range(8):
        k("v_perm_b32", OH[j], RH[2 * j + 1], RH[2 * j], sperm_lo)
    k("ds_write_b128", vki, OH[0:4], mod="offset:1024")
    k("ds_write_b128", vki2, OH[4:8], mod="offset:1024")
    signal(2)
    await_(2)
    k.release(m2)
    if os.environ.get("CPRIO"):
        k("s_setprio", os.environ["CPRIO"])
    sthr = k.s(); scb = k.s()
    k("s_cmp_lt_u32", swave, 2)
    k("s_cselect_b32", sthr, 24, 28)
    k("s_cselect_b32", scb, 2 * k2.G1_STAGE, 0)
    lab = k.newlabel("WG")
    vgc = k.v()
    k("v_mov_b32", vgc, FL_BASE + 32)
    k.clear()
    k.label(lab)
    k("s_sleep", 1)
    k("ds_read_b32", vft, vgc)
    k.waitcnt(lgkm=0)
    k("v_readfirstlane_b32", sfl, vft)
    k("s_cmp_lt_u32", sfl, sthr)
    k("s_cbranch_scc1", lab)
    m3 = k.mark()
    slb = k.s()
    k("s_mul_i32", slb, shw, 4 * CPITCH)
    k("s_add_u32", slb, slb, scb)
    vw = k.v()
    k("v_add_u32", vw, slb, va)
    T1 = k.v(4); T2 = k.v(4); T3 = k.v(4)
    sex = k.s(2)
    k.waitcnt(vm=0)
    for it in range(5):
        w = W[it]
        if it == 4:
            k("v_cmp_gt_u32", "vcc", 4, lane)
            k("s_and_saveexec_b64", sex, "vcc")
        for j in range(4):
            k("v_alignbit_b32", T1[j], w[j + 1], w[j], 16)
            k("v_mov_b32", T2[j], w[j + 1])
            k("v_alignbit_b32", T3[j], w[j + 2], w[j + 1], 16)
        k("ds_write_b128", vw, w[0:4], mod=f"offset:{it * 1024}")
        k("ds_write_b128", vw, T1, mod=f"offset:{it * 1024 + CPITCH}")
        k("ds_write_b128", vw, T2, mod=f"offset:{it * 1024 + 2 * CPITCH}")
        k("ds_write_b128", vw, T3, mod=f"offset:{it * 1024 + 3 * CPITCH}")
        if it == 4:
            k("s_mov_b64", "exec", sex)
    k.release(m3)
    signal(3)
    await_(3)
    k.stamp()
    syt = ws_srd(k, ptr, WS_YT, D * L * 2)
    vr = k.v()
    k("v_add_u32", t0, 1, i16)
    k("v_and_b32", t1, 7, t0)
    k("v_mul_u32_u24", vr, CPITCH, t1)
    k("v_lshrrev_b32", t0, 3, t0)
    k("v_sub_u32", t0, t0, kg)
    k("v_add_u32", t0, 3, t0)
    k("v_lshl_add_u32", vr, t0, 4, vr)
    sb2 = k.s()
    k("s_lshl_b32", sb2, sp, 5)
    k("s_add_u32", st, scb, sb2)
    k("v_add_u32", vr, st, vr)
    vkrs = [k.v() for _ in range(3)]
    vm = k.v(); vm2 = k.v()
    s78 = k.s()
    k("s_mov_b32", s78, "0x78")
    Y = [k.v(4) for _ in range(4)]
    NBF = 3
    KF = [[k.v(4) for _ in range(4)] for _ in range(NBF)]
    A = [[k.v(4) for _ in range(4)] for _ in range(NBF)]

    def rd(c0):
        vkr = vkrs[c0 % 3]
        k("v_add_u32", vm, 16 - c0, i16)
        k("v_bfe_u32", vm2, vm, 2, 2)
        k("v_lshlrev_b32", vm2, 1, vm2)
        k("v_lshrrev_b32", vm2, vm2, s78)
        k("v_and_b32", vm2, 3, vm2)
        k("v_xor_b32", vm2, vm2, kg)
        k("v_lshlrev_b32", vm, 6, vm)
        k("v_lshl_add_u32", vkr, vm2, 4, vm)
        k("v_add_u32", vkr, ski, vkr)
        for t in range(4):
            k("ds_read_b128", KF[c0 % NBF][t], vkr, mod=f"offset:{1024 * t}")
        for c1 in range(4):
            k("ds_read_b128", A[c0 % NBF][c1], vr, mod=f"offset:{64 * (16 * c1 + c0)}")
    swd = k.s(4); k.srd(swd, ptr["wd"], F * D * 2)
    swo = k.s()
    k("s_lshr_b32", swo, swg, 3)
    k("s_lshl_b32", swo, swo, 2)
    k("s_add_u32", swo, swo, swave)
    k("s_mul_i32", swo, swo, 14 * 1024)
    vpd = k.v(4)
    rd(0)
    for c0 in range(16):
        if c0 == 0:
            rd(1)
        if c0 < 15:
            k.waitcnt(lgkm=8)
        else:
            k.waitcnt(lgkm=0)
        if c0 + 2 < 16:
            rd(c0 + 2)
        for c1 in range(4):
            for T in range(c1, 4):
                first = (c0 == 0 and c1 == 0)
                k("v_mfma_f32_16x16x32_f16", Y[T], A[c0 % NBF][c1], KF[c0 % NBF][T - c1], 0 if first else Y[T])
        if c0 < 14:
            k("buffer_load_dwordx4", vpd, va, swd, swo, mod="offen")
            k("s_add_u32", swo, swo, 1024)
    vo = k.v()
    k("v_lshlrev_b32", vo, 6, i16)
    k("v_lshl_add_u32", vo, kg, 3, vo)
    k("v_add_u32", vo, sb2, vo)
    sk = k.s()
    k("s_lshl_b32", sk, sd, 12)
    O = [k.v(2) for _ in range(4)]
    for T in range(4):
        for r in range(4):
            k("v_mul_f32", Y[T][r], Y[T][r], kinv)
        k("v_cvt_pk_bf16_f32", O[T][0], Y[T][0], Y[T][1])
        k("v_cvt_pk_bf16_f32", O[T][1], Y[T][2], Y[T][3])
        k("buffer_store_dwordx2", O[T], vo, syt, sk, mod=f"offen offset:{T * 1024}")


def gen_k23b(stamps=False, hilo=True):
    k = Asm()
    k.reset_regs(v0=1, s0=4)
    if stamps:
        k.stamp_init(8)
    k.stamp()
    name = "k23_kernel"
    DIST = os.environ.get("DIST")
    if DIST:
        rt0 = k.s(2); rt1 = k.s(2)
        k("s_memrealtime", rt0)
    k("s_cmp_ge_u32", "s2", "256")
    k("s_cbranch_scc1", "K23_END")
    ptr = load_kernargs(k)
    lane = k.v(); wv = k.v(); swave = k.s()
    k("v_and_b32", lane, 63, "v0")
    k("v_lshrrev_b32", wv, 6, "v0")
    k("v_readfirstlane_b32", swave, wv)
    k.waitcnt(lgkm=0)
    swg = k.s()
    k("s_mov_b32", swg, "s2")
    k("s_cmp_ge_u32", swave, 4)
    k.clear()
    k("s_cbranch_scc1", "K23_SIDE")
    mk = k.mark()
    side_st = os.environ.get("SIDE_ST")
    sv = k.stamps if stamps else None
    if side_st:
        k.stamps = None
    k("s_setprio", os.environ.get("GPRIO", "0"))
    gemm1_body(k, ptr, swg, lane, wv, swave, cnt_addr=FL_BASE + 32)
    k.stamp()
    k.waitcnt(vm=0)
    k.stamp()
    k.stamp_dump(ptr["dbg"], 5)
    if DIST:
        k.waitcnt(vm=0)
        k("s_memrealtime", rt1)
        k.waitcnt(lgkm=0)
        sdd = ws_srd(k, ptr, 22 << 20, 1 << 20)
        vt_ = k.v(2); vo_ = k.v()
        k("v_lshlrev_b32", vo_, 3, wv)
        k("s_lshl_b32", rt0[1], "s2", 6)
        k("v_mov_b32", vt_[0], rt0[0])
        k("v_mov_b32", vt_[1], rt1[0])
        k("buffer_store_dwordx2", vt_, vo_, sdd, rt0[1], mod="offen")
    k("s_endpgm")
    k.release(mk)
    k.label("K23_SIDE")
    k.stamps = sv if (side_st and stamps) else None
    k.nstamp = 1
    k("s_sub_u32", swave, swave, 4)
    k("s_setprio", os.environ.get("SPRIO", "3"))
    side_body(k, ptr, swg, lane, swave, hilo)
    if side_st and stamps:
        k.stamp()
        k("v_subrev_u32", "v0", 256, "v0") if False else k.raw("    v_subrev_u32 v0, 256, v0")
        k.stamp_dump(ptr["dbg"], 5)
    if DIST:
        k.waitcnt(vm=0)
        k("s_memrealtime", rt1)
        k.waitcnt(lgkm=0)
        sdd = ws_srd(k, ptr, 22 << 20, 1 << 20)
        vt_ = k.v(2); vo_ = k.v()
        k("v_lshlrev_b32", vo_, 3, wv)
        k("s_lshl_b32", rt0[1], "s2", 6)
        k("v_mov_b32", vt_[0], rt0[0])
        k("v_mov_b32", vt_[1], rt1[0])
        k("buffer_store_dwordx2", vt_, vo_, sdd, rt0[1], mod="offen")
    k.label("K23_END")
    k("s_endpgm")
    return name, k, dict(grid=256, block=512, lds=K23_LDS)
```

```python
import math, os
from asmgen import *
from k1 import *

G1_STAGE = 45056
G1_XOFF = 28672
G1_NB = 3
G1_LDS = G1_STAGE * G1_NB
GK1 = -2.0 * math.log2(math.e) * math.sqrt(2.0 / math.pi)
GK2 = GK1 * 0.044715


def gemm1_body(k, ptr, swg, lane, wv, swave, cnt_addr=None):
    sxn = ws_srd(k, ptr, WS_XN, L * D * 2)
    sh = ws_srd(k, ptr, WS_H, L * F * 2)
    smat = k.s(); sw1 = k.s(); st = k.s()
    k("s_lshr_b32", smat, swave, 1)
    k("s_and_b32", sw1, swave, 1)
    sW = k.s(4)
    k("s_cmp_eq_u32", smat, 0)
    k("s_cselect_b32", sW[0], ptr["wg"][0], ptr["wu"][0])
    k("s_cselect_b32", sW[1], ptr["wg"][1], ptr["wu"][1])
    k("s_and_b32", sW[1], sW[1], "0xffff")
    k("s_mov_b32", sW[2], str(D * F * 2))
    k("s_mov_b32", sW[3], "0x00020000")
    smt = k.s(); snt = k.s()
    k("s_lshr_b32", smt, swg, 4)
    k("s_and_b32", snt, swg, 15)
    sn0b = k.s()
    k("s_mul_i32", sn0b, snt, 224)
    i16 = k.v(); kg = k.v()
    k("v_and_b32", i16, 15, lane)
    k("v_lshrrev_b32", kg, 4, lane)
    vd = [k.v() for _ in range(7)]
    t0, t1, t2 = k.v(), k.v(), k.v()
    t3 = k.v(); smag = k.s()
    sgo = k.s()
    k("s_mul_i32", sgo, sw1, 32 * 3584)
    k("s_add_u32", sgo, sgo, sn0b)
    slo = k.s()
    k("s_mul_i32", slo, swave, 7168)
    sso = k.s(); ssx = k.s()

    vdx = k.v()
    k("v_lshrrev_b32", t0, 3, lane)
    k("v_and_b32", t1, 7, lane)
    k("v_xor_b32", t1, t1, t0)
    k("v_lshlrev_b32", t1, 4, t1)
    k("v_lshl_add_u32", vdx, t0, 10, t1)
    srow = k.s()
    k("s_lshl_b32", srow, smt, 7)
    k("s_lshl_b32", st, swave, 5)
    k("s_add_u32", srow, srow, st)
    sxg = k.s()
    k("s_lshl_b32", sxg, srow, 10)
    sxl = k.s()
    k("s_lshl_b32", sxl, swave, 12)
    k("s_add_u32", sxl, sxl, G1_XOFF)

    def dma_list(stage):
        buf = stage % G1_NB
        out = []
        for j in range(7):
            def f(j=j):
                if j == 0:
                    k("s_add_u32", sso, sgo, str(stage * 64 * 3584))
                k("s_add_u32", "m0", slo, str(buf * G1_STAGE + j * 1024))
                k("buffer_load_dwordx4", vd[j], sW, sso, mod="offen lds")
            out.append(f)
        for jj in range(4):
            def g(jj=jj):
                k("s_add_u32", ssx, sxg, str(stage * 128 + jj * 8192))
                k("s_add_u32", "m0", sxl, str(buf * G1_STAGE + jj * 1024))
                k("buffer_load_dwordx4", vdx, sxn, ssx, mod="offen lds")
            out.insert(2 * jj + 1, g)
        return out

    def dma(stage):
        for f in dma_list(stage):
            f()

    d0 = dma_list(0)
    for jj in range(4):
        d0[2 * jj + 1]()
    k("s_mov_b32", smag, 4682)
    for j in range(7):
        k("v_add_u32", t0, 64 * j, lane)
        k("v_mul_lo_u32", t1, t0, smag)
        k("v_lshrrev_b32", t1, 16, t1)
        k("v_mul_u32_u24", t2, 14, t1)
        k("v_sub_u32", t0, t0, t2)
        k("v_lshrrev_b32", t2, 1, t0)
        k("v_bfe_u32", t3, t1, 3, 1)
        k("v_mul_u32_u24", t3, 3, t3)
        k("v_add_u32", t2, t2, t3)
        k("v_subrev_u32", t3, 7, t2)
        k("v_cmp_le_u32", "vcc", 7, t2)
        k("v_cndmask_b32", t2, t2, t3, "vcc")
        k("v_and_b32", t0, 1, t0)
        k("v_lshlrev_b32", t0, 4, t0)
        k("v_lshl_add_u32", t0, t2, 5, t0)
        k("v_mul_u32_u24", t1, 3584, t1)
        k("v_add_u32", vd[j], t0, t1)
        d0[[0, 2, 4, 6, 8, 9, 10][j]]()
    dma(1)
    vxr = [k.v(), k.v()]
    k("v_and_b32", t1, 7, i16)
    k("v_xor_b32", t1, t1, kg)
    k("v_lshlrev_b32", t0, 7, i16)
    k("v_add_u32", t0, sxl, t0)
    k("v_lshl_add_u32", vxr[0], t1, 4, t0)
    k("v_xor_b32", t1, 4, t1)
    k("v_lshl_add_u32", vxr[1], t1, 4, t0)
    vxr2 = [k.v(), k.v()]
    k("v_add_u32", vxr2[0], 65536, vxr[0])
    k("v_add_u32", vxr2[1], 65536, vxr[1])
    k("v_add_u32", t0, srow, i16)
    vh = [k.v(), k.v()]
    k("v_mul_u32_u24", t1, 3584, t0)
    k("v_lshl_add_u32", t1, kg, 3, t1)
    k("v_add_u32", vh[0], sn0b, t1)
    k("v_add_u32", vh[1], 16 * 3584, vh[0])
    va = [k.v() for _ in range(7)]
    rr = k.v()
    k("v_lshrrev_b32", rr, 2, i16)
    k("v_lshl_add_u32", t0, kg, 3, rr)
    k("v_mul_u32_u24", t0, 224, t0)
    k("v_and_b32", t1, 3, i16)
    k("v_lshl_add_u32", t0, t1, 3, t0)
    k("v_and_b32", t1, 1, kg)
    k("v_cmp_eq_u32", "vcc", 1, t1)
    for t in range(7):
        k("v_mov_b32", t1, t * 32)
        k("v_mov_b32", t2, ((t + 4) % 7) * 32)
        k("v_cndmask_b32", t1, t1, t2, "vcc")
        k("v_add_u32", va[t], t0, t1)
    vb = [k.v() for _ in range(7)]
    for t in range(7):
        k("v_add_u32", vb[t], 65536, va[t])
    ACC = [[[k.v(4) for _ in range(2)] for _ in range(7)] for _ in range(2)]
    if cnt_addr is not None:
        vcnt = k.v(); vone = k.v(); vcv = k.v(); scv = k.s()
        k("v_mov_b32", vcnt, cnt_addr)
        k("v_mov_b32", vone, 1)
        k("v_mov_b32", vcv, 0)
        k("ds_write_b32", vcnt, vcv)
        k.waitcnt(lgkm=0)
    R = 6
    WF = [k.v(4) for _ in range(R)]
    XF = [[k.v(4) for _ in range(2)] for _ in range(2)]
    items = [(ks, mat, t) for ks in range(2) for t in range(7) for mat in range(2)]
    for s in range(8):
        buf = s % G1_NB
        k.waitcnt(vm=11 if s < 7 else 0)
        if cnt_addr is None:
            k("s_barrier")
        else:
            if s == 0:
                k("s_barrier")
            else:
                k("s_mov_b64", "exec", 1)
                k("ds_add_u32", vcnt, vone)
                k("s_mov_b64", "exec", -1)
                lab = k.newlabel("GSPIN")
                k.clear()
                k.label(lab)
                k("ds_read_b32", vcv, vcnt)
                k.waitcnt(lgkm=0)
                k("v_readfirstlane_b32", scv, vcv)
                k("s_cmp_lt_u32", scv, 4 * s)
                k("s_cbranch_scc1", lab)
        if s in (0, 1, 4):
            k.stamp()
        pend = dma_list(s + 2) if s + 2 < 8 else []
        base = buf * G1_STAGE
        for ks in range(2):
            for mt in range(2):
                if base + mt * 2048 <= 65535:
                    k("ds_read_b128", XF[ks][mt], vxr[ks], mod=f"offset:{base + mt * 2048}")
                else:
                    k("ds_read_b128", XF[ks][mt], vxr2[ks], mod=f"offset:{base + mt * 2048 - 65536}")

        def rd(i):
            ks, mat, t = items[i]
            off = base + mat * 14336 + ks * 7168
            if off + 896 <= 65535:
                k("ds_read_b64_tr_b16", WF[i % R][0:2], va[t], mod=f"offset:{off}")
                k("ds_read_b64_tr_b16", WF[i % R][2:4], va[t], mod=f"offset:{off + 896}")
            else:
                k("ds_read_b64_tr_b16", WF[i % R][0:2], vb[t], mod=f"offset:{off - 65536}")
                k("ds_read_b64_tr_b16", WF[i % R][2:4], vb[t], mod=f"offset:{off + 896 - 65536}")
        for i in range(R - 1):
            rd(i)
        for i, (ks, mat, t) in enumerate(items):
            if i + R - 1 < len(items):
                rd(i + R - 1)
                k.waitcnt(lgkm=2 * (R - 1))
            else:
                k.waitcnt(lgkm=2 * (len(items) - 1 - i))
            for mt in range(2):
                first = (s == 0 and ks == 0)
                k("v_mfma_f32_16x16x32_bf16", ACC[mat][t][mt], WF[i % R], XF[ks][mt], 0 if first else ACC[mat][t][mt])
            if pend and (i % 2 == 0):
                pend.pop(0)()
    if cnt_addr is not None:
        k("s_mov_b64", "exec", 1)
        k("ds_add_u32", vcnt, vone)
        k("s_mov_b64", "exec", -1)
    if os.environ.get("EPRIO"):
        k("s_setprio", os.environ["EPRIO"])
    k.stamp()
    smask = k.s(); sk1 = k.s(2); sk2 = k.s(2)
    k("s_mov_b32", smask, "0xffff0000")
    for j in range(2):
        k("s_mov_b32", sk1[j], fl(GK1))
        k("s_mov_b32", sk2[j], fl(GK2))
    XG = [k.v(4) for _ in range(2)]; XU = [k.v(4) for _ in range(2)]; E = [k.v(4) for _ in range(2)]
    O = [k.v(2), k.v(2)]
    n = 0
    for mt in range(2):
        for t in range(7):
            G = ACC[0][t][mt]; U = ACC[1][t][mt]
            xg = XG[n & 1]; xu = XU[n & 1]; e = E[n & 1]
            for p in range(2):
                k("v_cvt_pk_bf16_f32", xg[2 * p + 1], G[2 * p], G[2 * p + 1])
                k("v_cvt_pk_bf16_f32", xu[2 * p + 1], U[2 * p], U[2 * p + 1])
            for p in range(2):
                k("v_lshlrev_b32", xg[2 * p], 16, xg[2 * p + 1])
                k("v_and_b32", xg[2 * p + 1], smask, xg[2 * p + 1])
            for p in range(2):
                k("v_pk_mul_f32", e[2 * p:2 * p + 2], xg[2 * p:2 * p + 2], xg[2 * p:2 * p + 2])
            for p in range(2):
                k("v_pk_mul_f32", e[2 * p:2 * p + 2], e[2 * p:2 * p + 2], sk2)
            for p in range(2):
                k("v_pk_add_f32", e[2 * p:2 * p + 2], e[2 * p:2 * p + 2], sk1)
            for p in range(2):
                k("v_pk_mul_f32", e[2 * p:2 * p + 2], e[2 * p:2 * p + 2], xg[2 * p:2 * p + 2])
            for r in range(4):
                k("v_exp_f32", e[r], e[r])
            for p in range(2):
                k("v_lshlrev_b32", xu[2 * p], 16, xu[2 * p + 1])
                k("v_and_b32", xu[2 * p + 1], smask, xu[2 * p + 1])
            for p in range(2):
                k("v_pk_add_f32", e[2 * p:2 * p + 2], e[2 * p:2 * p + 2], "1.0", mod="op_sel_hi:[1,0]")
            for r in range(4):
                k("v_rcp_f32", e[r], e[r])
            for p in range(2):
                k("v_pk_mul_f32", e[2 * p:2 * p + 2], e[2 * p:2 * p + 2], xg[2 * p:2 * p + 2])
            for p in range(2):
                k("v_cvt_pk_bf16_f32", e[2 * p + 1], e[2 * p], e[2 * p + 1])
            for p in range(2):
                k("v_lshlrev_b32", e[2 * p], 16, e[2 * p + 1])
                k("v_and_b32", e[2 * p + 1], smask, e[2 * p + 1])
            for p in range(2):
                k("v_pk_mul_f32", e[2 * p:2 * p + 2], e[2 * p:2 * p + 2], xu[2 * p:2 * p + 2])
            o = O[n & 1]; n += 1
            k("v_cvt_pk_bf16_f32", o[0], e[0], e[1])
            k("v_cvt_pk_bf16_f32", o[1], e[2], e[3])
            k("buffer_store_dwordx2", o, vh[mt], sh, 0, mod=f"offen offset:{t * 32}")


def gen_k2(stamps=False):
    k = Asm()
    k.reset_regs(v0=1, s0=4)
    if stamps:
        k.stamp_init(8)
    k.stamp()
    name = "k2_kernel"
    k("s_cmp_ge_u32", "s2", "256")
    k("s_cbranch_scc1", "K2_END")
    ptr = load_kernargs(k)
    lane = k.v(); wv = k.v(); swave = k.s()
    k("v_and_b32", lane, 63, "v0")
    k("v_lshrrev_b32", wv, 6, "v0")
    k("v_readfirstlane_b32", swave, wv)
    k.waitcnt(lgkm=0)
    swg = k.s()
    k("s_mov_b32", swg, "s2")
    gemm1_body(k, ptr, swg, lane, wv, swave)
    k.stamp()
    k.waitcnt(vm=0)
    k.stamp()
    k.stamp_dump(ptr["dbg"], 5)
    k.label("K2_END")
    k("s_endpgm")
    return name, k, dict(grid=256, block=256, lds=G1_LDS)


def gen_k23(stamps=False, hilo=True):
    import k3
    k = Asm()
    k.reset_regs(v0=1, s0=4)
    if stamps:
        k.stamp_init(8)
    k.stamp()
    name = "k23_kernel"
    k("s_cmp_ge_u32", "s2", "256")
    k("s_cbranch_scc1", "K23_END")
    ptr = load_kernargs(k)
    lane = k.v(); wv = k.v(); swave = k.s()
    k("v_and_b32", lane, 63, "v0")
    k("v_lshrrev_b32", wv, 6, "v0")
    k("v_readfirstlane_b32", swave, wv)
    k.waitcnt(lgkm=0)
    swg = k.s()
    k("s_mov_b32", swg, "s2")
    k("s_cmp_ge_u32", swave, 4)
    k.clear()
    k("s_cbranch_scc1", "K23_CONV")
    mk = k.mark()
    k("s_setprio", os.environ.get("GPRIO", "3"))
    gemm1_body(k, ptr, swg, lane, wv, swave)
    k.stamp()
    k.waitcnt(vm=0)
    k.stamp()
    k.stamp_dump(ptr["dbg"], 5)
    k("s_endpgm")
    k.release(mk)
    k.label("K23_CONV")
    sv = k.stamps if stamps else None
    k.stamps = None
    k("s_sub_u32", swave, swave, 4)
    k3.conv_body(k, ptr, swg, lane, wv, swave, hilo, lbase=G1_LDS, nbar=7)
    k.label("K23_END")
    k("s_endpgm")
    return name, k, dict(grid=256, block=512, lds=G1_LDS + k3.CONV_LDS)
```

```python
import math
from asmgen import *
from k1 import *

RP = 272
G2_PART = 64 * RP
YP = 144
G2_Y = 131072
G2_LDS = G2_Y + 64 * YP
NLOG2E = -math.log2(math.e)


def gemm2_body(k, ptr, swg, lane, wv, swave):
    sh = ws_srd(k, ptr, WS_H, L * F * 2)
    sxn = ws_srd(k, ptr, WS_XN, L * D * 2)
    syt = ws_srd(k, ptr, WS_YT, L * D * 2)
    sW = k.s(4); k.srd(sW, ptr["wd"], F * D * 2)
    sx = k.s(4); k.srd(sx, ptr["u"], L * D * 2)
    sdk = k.s(4); k.srd(sdk, ptr["dsk"], D * 2)
    so = k.s(4); k.srd(so, ptr["out"], L * D * 2)
    st = k.s(); slt = k.s(); sdt = k.s()
    import os
    if os.environ.get("MAPB"):
        k("s_lshr_b32", slt, swg, 3)
        k("s_and_b32", sdt, swg, 7)
    else:
        k("s_and_b32", slt, swg, 7)
        k("s_lshl_b32", slt, slt, 2)
        k("s_lshr_b32", st, swg, 6)
        k("s_add_u32", slt, slt, st)
        k("s_lshr_b32", sdt, swg, 3)
        k("s_and_b32", sdt, sdt, 7)
    i16 = k.v(); kg = k.v()
    k("v_and_b32", i16, 15, lane)
    k("v_lshrrev_b32", kg, 4, lane)
    t0, t1, t2 = k.v(), k.v(), k.v()
    vd = [k.v(), k.v()]
    k("v_bfe_u32", t0, lane, 1, 2)
    k("v_and_b32", t1, 1, kg)
    k("v_xor_b32", t0, t0, t1)
    k("v_and_b32", t2, 1, lane)
    k("v_lshlrev_b32", t2, 4, t2)
    k("v_lshrrev_b32", t1, 3, lane)
    k("v_lshl_add_u32", t2, t1, 10, t2)
    k("v_lshl_add_u32", vd[0], t0, 5, t2)
    k("v_xor_b32", t0, 2, t0)
    k("v_lshl_add_u32", vd[1], t0, 5, t2)
    sgo = k.s()
    k("s_mul_i32", sgo, swave, 448 * 1024)
    k("s_lshl_b32", st, sdt, 7)
    k("s_add_u32", sgo, sgo, st)
    slo = k.s()
    k("s_lshl_b32", slo, swave, 15)
    sso = k.s()
    vdh = k.v()
    k("v_lshrrev_b32", t0, 3, lane)
    k("v_and_b32", t1, 7, lane)
    k("v_xor_b32", t1, t1, t0)
    k("v_lshlrev_b32", t1, 4, t1)
    k("v_mul_u32_u24", t0, 3584, t0)
    k("v_add_u32", vdh, t0, t1)
    sl0 = k.s()
    k("s_lshl_b32", sl0, slt, 6)
    shg = k.s()
    k("s_mul_i32", shg, sl0, 3584)
    k("s_mul_i32", st, swave, 896)
    k("s_add_u32", shg, shg, st)

    def loads(s):
        b = (s & 1) * 16384
        for j in range(8):
            k("s_add_u32", sso, sgo, str((s * 64 + 8 * j) * 1024))
            k("s_add_u32", "m0", slo, str(b + j * 1024))
            k("buffer_load_dwordx4", vd[j & 1], sW, sso, mod="offen lds")
            k("s_add_u32", sso, shg, str(s * 128 + j * 8 * 3584))
            k("s_add_u32", "m0", slo, str(b + 8192 + j * 1024))
            k("buffer_load_dwordx4", vdh, sh, sso, mod="offen lds")

    k.stamp()
    loads(0)
    k.stamp()
    ve = k.v(); vy = k.v(); vdk = k.v()
    k("v_lshrrev_b32", t0, 2, "v0")
    k("v_and_b32", t1, 3, "v0")
    k("v_add_u32", t2, sl0, t0)
    k("v_lshlrev_b32", ve, 10, t2)
    k("v_lshl_add_u32", ve, t1, 5, ve)
    k("s_lshl_b32", st, sdt, 7)
    k("v_add_u32", ve, st, ve)
    k("v_lshlrev_b32", vdk, 5, t1)
    k("v_add_u32", vdk, st, vdk)
    sd0 = k.s()
    k("s_lshl_b32", sd0, sdt, 6)
    k("v_add_u32", t2, sd0, t0)
    k("v_lshlrev_b32", vy, 12, t2)
    k("v_lshl_add_u32", vy, t1, 5, vy)
    k("s_lshl_b32", st, slt, 7)
    k("v_add_u32", vy, st, vy)
    EX = k.v(8); EN = k.v(8); ED = k.v(8); EY = k.v(8)
    for (R_, v_, s_) in ((EX, ve, sx), (EN, ve, sxn), (ED, vdk, sdk), (EY, vy, syt)):
        k("buffer_load_dwordx4", R_[0:4], v_, s_, 0, mod="offen")
        k("buffer_load_dwordx4", R_[4:8], v_, s_, 0, mod="offen offset:16")
    vyl = k.v()
    k("v_mul_u32_u24", vyl, YP, t0)
    k("v_lshl_add_u32", vyl, t1, 5, vyl)
    k("v_add_u32", vyl, G2_Y, vyl)
    va = [k.v() for _ in range(4)]
    rr = k.v(); gg = k.v()
    k("v_lshrrev_b32", rr, 2, i16)
    k("v_lshrrev_b32", gg, 1, rr)
    k("v_and_b32", t1, 1, kg)
    k("v_lshl_add_u32", gg, t1, 1, gg)
    k("v_lshl_add_u32", t0, kg, 3, rr)
    k("v_lshlrev_b32", t0, 7, t0)
    k("v_and_b32", t1, 3, i16)
    k("v_lshl_add_u32", t0, t1, 3, t0)
    k("v_add_u32", t0, slo, t0)
    for t in range(4):
        k("v_xor_b32", t1, t, gg)
        k("v_lshl_add_u32", va[t], t1, 5, t0)
    vhr = [k.v(), k.v()]
    k("v_and_b32", t1, 7, i16)
    k("v_xor_b32", t1, t1, kg)
    k("v_lshlrev_b32", t0, 7, i16)
    k("v_add_u32", t0, slo, t0)
    k("v_lshl_add_u32", vhr[0], t1, 4, t0)
    k("v_xor_b32", t1, 4, t1)
    k("v_lshl_add_u32", vhr[1], t1, 4, t0)
    ACC = [[k.v(4) for _ in range(4)] for _ in range(4)]
    WF = [[k.v(4) for _ in range(4)] for _ in range(2)]
    HF = [[k.v(4) for _ in range(4)] for _ in range(4)]

    def rd(s, ks):
        b = (s & 1) * 16384
        for t in range(4):
            off = b + ks * 4096
            k("ds_read_b64_tr_b16", WF[ks][t][0:2], va[t], mod=f"offset:{off}")
            k("ds_read_b64_tr_b16", WF[ks][t][2:4], va[t], mod=f"offset:{off + 512}")
        for lt in range(4):
            k("ds_read_b128", HF[ks][lt], vhr[ks], mod=f"offset:{b + 8192 + lt * 2048}")
    NSTEP = 7
    for s in range(NSTEP):
        if s + 1 < NSTEP:
            loads(s + 1)
            k.waitcnt(vm=16)
        else:
            k.waitcnt(vm=0)
        if s == 0:
            k.stamp()
        rd(s, 0)
        rd(s, 1)
        for ks in range(2):
            k.waitcnt(lgkm=12 if ks == 0 else 0)
            for dt in range(4):
                for lt in range(4):
                    k("v_mfma_f32_16x16x32_bf16", ACC[dt][lt], WF[ks][dt], HF[ks][lt], ACC[dt][lt] if (s or ks) else 0)
    k.stamp()
    k.stamp()
    vps = [k.v() for _ in range(4)]
    k("v_lshlrev_b32", t0, 8, i16)
    k("v_add_u32", t0, slo, t0)
    for dt in range(4):
        k("v_add_u32", t1, 4 * dt, kg)
        k("v_xor_b32", t1, t1, i16)
        k("v_lshl_add_u32", vps[dt], t1, 4, t0)
    for dt in range(4):
        for lt in range(4):
            k("ds_write_b128", vps[dt], ACC[dt][lt], mod=f"offset:{lt * 4096}")
    k("ds_write_b128", vyl, EY[0:4])
    k("ds_write_b128", vyl, EY[4:8], mod="offset:16")
    k("v_lshrrev_b32", t0, 2, "v0")
    k("v_and_b32", t1, 3, "v0")
    vqs = vps
    k("v_and_b32", t2, 15, t0)
    for c in range(4):
        k("v_lshl_add_u32", vqs[c], t1, 2, c)
        k("v_xor_b32", vqs[c], vqs[c], t2)
        k("v_lshlrev_b32", vqs[c], 4, vqs[c])
        k("v_lshl_add_u32", vqs[c], t0, 8, vqs[c])
    k.waitcnt(lgkm=0)
    k("s_barrier")
    PS = HF
    vq2 = [k.v() for _ in range(4)]
    for c in range(4):
        k("v_add_u32", vq2[c], 65536, vqs[c])
    for w in range(4):
        for c in range(4):
            if w < 2:
                k("ds_read_b128", PS[w][c], vqs[c], mod=f"offset:{w * 32768}")
            else:
                k("ds_read_b128", PS[w][c], vq2[c], mod=f"offset:{(w - 2) * 32768}")
    vyr = k.v()
    k("v_mul_u32_u24", vyr, 16 * YP, t1)
    k("v_lshl_add_u32", vyr, t0, 1, vyr)
    k("v_add_u32", vyr, G2_Y, vyr)
    YVl = [WF[0][e >> 2][e & 3] for e in range(16)]
    class _Y:
        def __getitem__(self, e):
            return YVl[e]
    YV = _Y()
    for e in range(16):
        k("ds_read_u16", YV[e], vyr, mod=f"offset:{e * YP}")
    k.waitcnt(lgkm=0)
    smask = k.s(); snl = k.s()
    k("s_mov_b32", smask, "0xffff0000")
    k("s_mov_b32", snl, fl(NLOG2E))
    OUT = EY
    f = [WF[1][0][r] for r in range(4)]; g = [WF[1][1][r] for r in range(4)]; a = [WF[1][2][r] for r in range(4)]; b = [WF[1][3][r] for r in range(4)]

    def unpack(dst2, src):
        k("v_lshlrev_b32", dst2[0], 16, src)
        k("v_and_b32", dst2[1], smask, src)

    for c in range(4):
        for r in range(4):
            k("v_add_f32", f[r], PS[0][c][r], PS[1][c][r])
            k("v_add_f32", g[r], PS[2][c][r], PS[3][c][r])
        for r in range(4):
            k("v_add_f32", f[r], f[r], g[r])
        for p in range(2):
            k("v_cvt_pk_bf16_f32", f[2 * p + 1], f[2 * p], f[2 * p + 1])
            unpack(f[2 * p:2 * p + 2], f[2 * p + 1])
        for r in range(4):
            k("v_mul_f32", g[r], snl, f[r])
        for r in range(4):
            k("v_exp_f32", g[r], g[r])
        for r in range(4):
            k("v_add_f32", g[r], 1.0, g[r])
        for r in range(4):
            k("v_rcp_f32", g[r], g[r])
        for r in range(4):
            k("v_mul_f32", g[r], g[r], f[r])
        for p in range(2):
            k("v_cvt_pk_bf16_f32", g[2 * p + 1], g[2 * p], g[2 * p + 1])
            unpack(g[2 * p:2 * p + 2], g[2 * p + 1])
        for p in range(2):
            unpack(a[2 * p:2 * p + 2], EN[2 * c + p])
            unpack(b[2 * p:2 * p + 2], ED[2 * c + p])
        for r in range(4):
            k("v_mul_f32", a[r], a[r], b[r])
        for p in range(2):
            k("v_cvt_pk_bf16_f32", a[2 * p + 1], a[2 * p], a[2 * p + 1])
            unpack(a[2 * p:2 * p + 2], a[2 * p + 1])
        for r in range(4):
            k("v_lshlrev_b32", b[r], 16, YV[4 * c + r])
        for r in range(4):
            k("v_add_f32", a[r], a[r], b[r])
        for p in range(2):
            k("v_cvt_pk_bf16_f32", a[2 * p + 1], a[2 * p], a[2 * p + 1])
            unpack(a[2 * p:2 * p + 2], a[2 * p + 1])
        for r in range(4):
            k("v_mul_f32", a[r], a[r], g[r])
        for p in range(2):
            k("v_cvt_pk_bf16_f32", a[2 * p + 1], a[2 * p], a[2 * p + 1])
            unpack(a[2 * p:2 * p + 2], a[2 * p + 1])
        for p in range(2):
            unpack(b[2 * p:2 * p + 2], EX[2 * c + p])
        for r in range(4):
            k("v_add_f32", a[r], a[r], b[r])
        for p in range(2):
            k("v_cvt_pk_bf16_f32", OUT[2 * c + p], a[2 * p], a[2 * p + 1])
    k("buffer_store_dwordx4", OUT[0:4], ve, so, 0, mod="offen")
    k("buffer_store_dwordx4", OUT[4:8], ve, so, 0, mod="offen offset:16")


def gen_k4(stamps=False):
    k = Asm()
    k.reset_regs(v0=1, s0=4)
    if stamps:
        k.stamp_init(9)
    k.stamp()
    name = "k4_kernel"
    k("s_cmp_ge_u32", "s2", "256")
    k("s_cbranch_scc1", "K4_END")
    ptr = load_kernargs(k)
    lane = k.v(); wv = k.v(); swave = k.s()
    k("v_and_b32", lane, 63, "v0")
    k("v_lshrrev_b32", wv, 6, "v0")
    k("v_readfirstlane_b32", swave, wv)
    k.waitcnt(lgkm=0)
    k.stamp()
    swg = k.s()
    k("s_mov_b32", swg, "s2")
    gemm2_body(k, ptr, swg, lane, wv, swave)
    k.stamp()
    k.waitcnt(vm=0)
    k.stamp()
    k.stamp_dump(ptr["dbg"], 5)
    k.label("K4_END")
    k("s_endpgm")
    return name, k, dict(grid=256, block=256, lds=G2_LDS)
```
